```python
import torch

def _softmax(x, axis=-1):
    return torch.softmax(x, dim=axis)

def _gelu(x):
    return torch.nn.functional.gelu(x, approximate='tanh')

def _silu(x):
    return torch.nn.functional.silu(x)

def _sigmoid(x):
    return torch.sigmoid(x)

def _layernorm(x, axis=-1, eps=1e-05):
    m = x.mean(dim=axis, keepdim=True)
    v = x.var(dim=axis, keepdim=True, unbiased=False)
    return (x - m) / torch.sqrt(v + eps)

def _scatter_add(tgt, idx, src, axis=0):
    return tgt.clone().index_add_(axis, idx, src)

def _segment_sum(src, seg, n):
    out = torch.zeros((n,) + src.shape[1:], dtype=src.dtype)
    return out.index_add_(0, seg, src)

def _pad(x, pw):
    flat = tuple((v for pair in reversed(pw) for v in pair))
    return torch.nn.functional.pad(x, flat)
kernel_name = 'gated_mix__spectral_fnet__mixer_gmlp__prompt'

def setup_inputs():

    _w = lambda a: (lambda t: t.to(torch.bfloat16) if t.is_floating_point() else t)(torch.as_tensor(a))

    def _A_setup():
        B, S, D = (1, 2048, 1024)
        ns = torch.arange(S)[:, None] * torch.arange(S)[None, :]
        nd = torch.arange(D)[:, None] * torch.arange(D)[None, :]
        Ws_re = torch.cos(-2.0 * torch.pi * ns / S).to(float)
        Ws_im = torch.sin(-2.0 * torch.pi * ns / S).to(float)
        Wd_re = torch.cos(-2.0 * torch.pi * nd / D).to(float)
        Wd_im = torch.sin(-2.0 * torch.pi * nd / D).to(float)
        return {'x': _w((lambda *s: torch.randn(*s, dtype=torch.bfloat16) * 0.05)(B, S, D)), 'dft_seq_re': _w(Ws_re), 'dft_seq_im': _w(Ws_im), 'dft_hid_re': _w(Wd_re), 'dft_hid_im': _w(Wd_im)}
    _A_in = _A_setup()

    def _B_setup():
        B, S, D, F = (1, 2048, 1024, 3584)
        Fh = F // 2
        return {'x': _w((lambda *s: torch.randn(*s, dtype=torch.bfloat16) * 0.05)(B, S, D)), 'w_in': _w((lambda *s: torch.randn(*s, dtype=torch.bfloat16) * 0.8)(D, 2 * Fh)), 'w_sp': _w(0.01 * (lambda *s: torch.randn(*s, dtype=torch.bfloat16) * 0.8)(S, S)), 'b_sp': _w(1.0 + 0.01 * (lambda *s: torch.randn(*s, dtype=torch.bfloat16) * 0.8)(S)), 'w_out': _w((lambda *s: torch.randn(*s, dtype=torch.bfloat16) * 0.8)(Fh, D))}
    _B_in = _B_setup()
    return {'A_x': _A_in['x'], 'A_dft_seq_re': _A_in['dft_seq_re'], 'A_dft_seq_im': _A_in['dft_seq_im'], 'A_dft_hid_re': _A_in['dft_hid_re'], 'A_dft_hid_im': _A_in['dft_hid_im'], 'B_x': _B_in['x'], 'B_w_in': _B_in['w_in'], 'B_w_sp': _B_in['w_sp'], 'B_b_sp': _B_in['b_sp'], 'B_w_out': _B_in['w_out'], 'gate_w': _w((lambda *s: torch.randn(*s, dtype=torch.bfloat16) * 0.05)(1024) * 16.0)}

def reference(A_x, A_dft_seq_re, A_dft_seq_im, A_dft_hid_re, A_dft_hid_im, B_x, B_w_in, B_w_sp, B_b_sp, B_w_out, gate_w):

    def _A_ref(x, dft_seq_re, dft_seq_im, dft_hid_re, dft_hid_im):
        a = torch.einsum('bsd,ed->bse', x, dft_hid_re)
        b = torch.einsum('bsd,ed->bse', x, dft_hid_im)
        y = torch.einsum('ts,bse->bte', dft_seq_re, a) - torch.einsum('ts,bse->bte', dft_seq_im, b)
        return y

    def _B_ref(x, w_in, w_sp, b_sp, w_out):
        B, S, D = x.shape
        F = w_in.shape[-1]
        Fh = F // 2
        z = _gelu(torch.einsum('bsd,df->bsf', x, w_in))
        z1 = z[..., :Fh].clone()
        z2 = _layernorm(z[..., Fh:], axis=-1)
        g = torch.einsum('ts,bsf->btf', w_sp, z2) + b_sp[None, :, None]
        return torch.einsum('bsf,fd->bsd', z1 * g, w_out)
    x = A_x
    g = _sigmoid((x * gate_w).sum(-1, keepdims=True))
    a = _A_ref(x, A_dft_seq_re, A_dft_seq_im, A_dft_hid_re, A_dft_hid_im)
    b = _B_ref(x, B_w_in, B_w_sp, B_b_sp, B_w_out)
    return g * a + (1 - g) * b
```

```python
NAME = "gated_mix__spectral_fnet__mixer_gmlp__prompt"
ARG = dict(x=0, seq_re=8, seq_im=16, hid_re=24, hid_im=32, bx=40, w_in=48, w_sp=56, b_sp=64, w_out=72, gate_w=80, out=88, dbg=96, ws=104)
SIZE = dict(x=2048*1024*2, seq_re=2048*2048*2, seq_im=2048*2048*2, hid_re=1024*1024*2, hid_im=1024*1024*2,
            w_in=1024*3584*2, w_sp=2048*2048*2, b_sp=4096, w_out=1792*1024*2, gate_w=2048, out=2048*1024*2, dbg=256, ws=268435456)

class Asm:
    def __init__(self, pfx=''):
        self.pfx = pfx
        self.lines = []
        self.uid = 0
    def __call__(self, s):
        for l in s.split("\n"):
            l = l.strip()
            if l:
                self.lines.append(("" if l.endswith(":") else "  ") + l)
    def label(self, base):
        self.uid += 1
        return f"L{self.pfx}_{base}_{self.uid}"
    def text(self):
        return "\n".join(self.lines) + "\n"

def vr(base, n=1):
    return f"v{base}" if n == 1 else f"v[{base}:{base+n-1}]"
def ar(base, n=1):
    return f"a{base}" if n == 1 else f"a[{base}:{base+n-1}]"
def sr(base, n=1):
    return f"s{base}" if n == 1 else f"s[{base}:{base+n-1}]"

def srd(a, dst, ptr, size, off=0):
    if off:
        a(f"s_add_u32 s{dst}, s{ptr}, {off:#x}")
        a(f"s_addc_u32 s{dst+1}, s{ptr+1}, 0")
    else:
        a(f"s_mov_b32 s{dst}, s{ptr}")
        a(f"s_mov_b32 s{dst+1}, s{ptr+1}")
    a(f"s_mov_b32 s{dst+2}, {size:#x}")
    a(f"s_mov_b32 s{dst+3}, 0x20000")

def interleave(main, fill):
    out = list(fill.get(-1, []))
    for i, m in enumerate(main):
        out.append(m)
        out += fill.get(i, [])
    return out

def kernel_file(header_launches, bodies):
    s = ""
    for (k, g, b, lds) in header_launches:
        s += f"; @launch kernel={k} grid=({g},1,1) block=({b},1,1) lds={lds}\n"
    s += '.amdgcn_target "amdgcn-amd-amdhsa--gfx950"\n.text\n'
    for (label, text, nv, acc, ns) in bodies:
        s += f".globl {label}\n.p2align 8\n.type {label},@function\n{label}:\n{text}"
    s += '.section .rodata,"a"\n'
    for (label, text, nv, acc, ns) in bodies:
        s += f""".p2align 6
.amdhsa_kernel {label}
  .amdhsa_next_free_vgpr {nv}
  .amdhsa_next_free_sgpr {ns}
  .amdhsa_accum_offset {acc}
  .amdhsa_group_segment_fixed_size 0
  .amdhsa_kernarg_size 112
  .amdhsa_user_sgpr_count 2
  .amdhsa_user_sgpr_kernarg_segment_ptr 1
  .amdhsa_system_sgpr_workgroup_id_x 1
  .amdhsa_float_denorm_mode_32 3
.end_amdhsa_kernel
"""
    return s
```

```python
from asmlib import *
from layout import *

MF = "v_mfma_f32_16x16x32_bf16"
BARPOS = [-1]

def spread(n_main, items, start=0):
    f = {}
    n = len(items)
    span = n_main - start
    for i, it in enumerate(items):
        p = start + (i * span) // max(n, 1)
        f.setdefault(p, []).append(it)
    return f

def merge(f1, f2):
    for k, v in f2.items():
        f1.setdefault(k, []).extend(v)
    return f1

def prologue(a, ptrs, endlabel):
    a(f"s_cmp_ge_u32 s2, 256\ns_cbranch_scc1 {endlabel}")
    for n, r in ptrs.items():
        a(f"s_load_dwordx2 s[{r}:{r+1}], s[0:1], {ARG[n]}")
    a("""
    v_lshrrev_b32 v1, 6, v0
    s_and_b32 s3, s2, 7
    v_readfirstlane_b32 s5, v1
    s_lshr_b32 s4, s2, 3
    v_and_b32 v0, 63, v0
    """)

def tile_4x7(a, rb, cb, t0):
    a(f"""
    s_mul_i32 s{rb}, s4, 37
    s_lshr_b32 s{rb}, s{rb}, 8
    s_mul_i32 s{cb}, s{rb}, 7
    s_sub_u32 s{cb}, s4, s{cb}
    s_lshr_b32 s{t0}, s3, 1
    s_lshl_b32 s{t0}, s{t0}, 2
    s_add_u32 s{rb}, s{rb}, s{t0}
    s_and_b32 s{t0}, s3, 1
    s_mul_i32 s{t0}, s{t0}, 7
    s_add_u32 s{cb}, s{cb}, s{t0}
    """)

def loader_loop(a, nst, nper, segs, dma, s_cnt, between=None):
    total = sum(segs)
    assert segs[0] >= nst
    for s in range(nst): dma()
    a(f"s_waitcnt vmcnt({nper*(nst-1)})\ns_barrier")
    for i, n in enumerate(segs):
        cnt = n - nst if i == 0 else n
        if cnt > 0:
            L = a.label("ld")
            a(f"s_mov_b32 s{s_cnt}, {cnt}\n{L}:")
            a(f"s_waitcnt vmcnt({nper*(nst-2)})\ns_barrier")
            dma()
            a(f"s_sub_u32 s{s_cnt}, s{s_cnt}, 1\ns_cmp_lg_u32 s{s_cnt}, 0\ns_cbranch_scc1 {L}")
        if between and i + 1 < len(segs): between(i)
    for i in range(nst):
        if nst - 2 - i >= 0: a(f"s_waitcnt vmcnt({nper*(nst-2-i)})")
        a("s_barrier")

def ring_advance(a_list, s_lds, s_lo, stg, nst, s_tmp):
    a_list += [f"s_add_u32 s{s_lds}, s{s_lds}, {stg}",
               f"s_add_u32 s{s_tmp}, s{s_lo}, {stg*nst}",
               f"s_cmp_ge_u32 s{s_lds}, s{s_tmp}",
               f"s_cselect_b32 s{s_lds}, s{s_lo}, s{s_lds}"]

def consumer_loop(a, nsteps, nst, stg, reads, mfmas, adregs, s_cnt, s_slot, s_delta, rdspan=0.5, extra=None, align=True):
    L = a.label("k")
    a(f"s_mov_b32 s{s_cnt}, {nsteps}")
    if align: a(".p2align 6")
    a(f"{L}:")
    M = mfmas(0); R = reads(1, 1)
    f = spread(max(int(len(M) * rdspan), 1), R)
    last = max(f.keys())
    sal = [f"s_add_u32 s{s_slot}, s{s_slot}, 1", f"s_cmp_eq_u32 s{s_slot}, {nst}",
           f"s_mov_b32 s{s_delta}, {stg}", f"s_cmov_b32 s{s_delta}, {-(nst-1)*stg & 0xffffffff:#x}", f"s_cselect_b32 s{s_slot}, 0, s{s_slot}"]
    f.setdefault(0, []).extend(sal)
    upd = [f"v_add_u32 v{r}, s{s_delta}, v{r}" for r in adregs]
    merge(f, spread(len(M), upd, start=min(last + 1, len(M) - 1)))
    if extra: merge(f, extra(0))
    a("s_waitcnt lgkmcnt(0)")
    a("\n".join(interleave(M, f)))
    M = mfmas(1); R = reads(0, 0)
    f = spread(max(int(len(M) * rdspan), 1), R)
    f.setdefault(len(M) - 2, []).extend([f"s_sub_u32 s{s_cnt}, s{s_cnt}, 1", f"s_cmp_lg_u32 s{s_cnt}, 0"])
    if extra: merge(f, extra(1))
    a("s_waitcnt lgkmcnt(0)\ns_barrier")
    a("\n".join(interleave(M, f)))
    a(f"s_cbranch_scc1 {L}")

def kc_frag_addr(a, dst0, dst1, t0, t1, t2):
    a(f"""
    v_and_b32 v{t0}, 15, v0
    v_lshrrev_b32 v{t1}, 4, v0
    v_lshrrev_b32 v{t2}, 1, v{t0}
    v_xor_b32 v{t1}, v{t1}, v{t2}
    v_lshlrev_b32 v{t1}, 4, v{t1}
    v_lshl_add_u32 v{dst0}, v{t0}, 7, v{t1}
    v_xor_b32 v{dst1}, 64, v{dst0}
    """)

def kc_dma_voff(a, dst, njs, s_row0, s_w32, rowshift, t0, t1, t2, t3, rowmul=None, perm=False):
    a(f"v_lshrrev_b32 v{t0}, 3, v0\nv_and_b32 v{t1}, 7, v0\nv_lshrrev_b32 v{t2}, 4, v0\nv_xor_b32 v{t1}, v{t1}, v{t2}\nv_lshlrev_b32 v{t1}, 4, v{t1}")
    for j in range(njs):
        if not perm:
            a(f"v_add_u32 v{t2}, {8*j}, v{t0}")
        else:
            a(f"v_lshrrev_b32 v{t2}, 2, v{t0}\nv_lshlrev_b32 v{t2}, 3, v{t2}\nv_and_b32 v{t3}, 3, v{t0}\nv_add_u32 v{t2}, v{t2}, v{t3}")
            a(f"v_add_u32 v{t2}, {16*(j&1) + 4*(j>>1)}, v{t2}")
        a(f"v_add_u32 v{t2}, s{s_w32}, v{t2}")
        a(f"v_lshlrev_b32 v{t2}, {rowshift}, v{t2}")
        a(f"v_add_u32 v{t2}, s{s_row0}, v{t2}")
        if j & 1: a(f"v_xor_b32 v{t3}, 64, v{t1}\nv_add_u32 v{t2}, v{t2}, v{t3}")
        else: a(f"v_add_u32 v{t2}, v{t2}, v{t1}")
        a(f"v_subrev_u32 v{dst+j}, {1024*j}, v{t2}")

def stamp(a, s_t, slot, ws_srd, vt, cond_wave=None):
    a(f"s_memrealtime s[{s_t}:{s_t+1}]\ns_memtime s[98:99]\ns_waitcnt lgkmcnt(0)\nv_mov_b32 v{vt}, s{s_t}\nv_mov_b32 v{vt+1}, 0")
    a(f"s_lshl_b32 s{s_t}, s2, 7\ns_add_u32 s{s_t}, s{s_t}, {TS_OFF + 4*slot + 65536*int(a.pfx)}")
    a(f"buffer_store_dword v{vt}, v{vt+1}, s[{ws_srd}:{ws_srd+3}], s{s_t} offen")
    a(f"s_nop 0\nv_mov_b32 v{vt}, s98\nbuffer_store_dword v{vt}, v{vt+1}, s[{ws_srd}:{ws_srd+3}], s{s_t} offen offset:64")


def consumer_loop_step(a, nsteps, rings, reads, mfmas, s_cnt, rdspan=0.7, align=True, mode=''):
    assert nsteps % 2 == 0
    L = a.label("k")
    def adv():
        sal, val = [], []
        for (nst, stg, adregs, s_slot, s_delta) in rings:
            sal += [f"s_add_u32 s{s_slot}, s{s_slot}, 1", f"s_cmp_eq_u32 s{s_slot}, {nst}",
                    f"s_mov_b32 s{s_delta}, {stg}", f"s_cmov_b32 s{s_delta}, {-(nst-1)*stg & 0xffffffff:#x}", f"s_cselect_b32 s{s_slot}, 0, s{s_slot}"]
            val += [f"v_add_u32 v{r}, s{s_delta}, v{r}" for r in adregs]
        return sal, val
    sal, val = adv()
    a("\n".join(sal + val))
    a(f"s_mov_b32 s{s_cnt}, {nsteps // 2}")
    if align: a(".p2align 6")
    a(f"{L}:")
    for buf in range(2):
        M = mfmas(buf); R = reads(buf ^ 1)
        n = max(int(len(M) * rdspan), 1)
        f = spread(n, R)
        sal, val = adv()
        if 'nosal' not in mode:
            merge(f, spread(n, sal))
            merge(f, spread(len(M) - 1, val, start=n))
        if buf == 1: f.setdefault(len(M) - 1, []).extend([f"s_sub_u32 s{s_cnt}, s{s_cnt}, 1", f"s_cmp_lg_u32 s{s_cnt}, 0"])
        a("s_waitcnt lgkmcnt(0)" + ("" if 'nobar' in mode else "\ns_barrier"))
        a("\n".join(interleave(M, f)))
    a(f"s_cbranch_scc1 {L}")


def body4(a, reads, mfmas, rdspan=0.5, tail=None, extra=None, bar=None, mid=None, barpos=BARPOS):
    for sl in range(4):
        if sl == 2 and mid: a(mid)
        M = mfmas(0); f = spread(max(int(len(M) * rdspan), 1), reads(sl, 1, 1))
        if extra: merge(f, extra(sl, 0))
        a("s_waitcnt lgkmcnt(0)")
        a("\n".join(interleave(M, f)))
        M = mfmas(1); f = spread(max(int(len(M) * rdspan), 1), reads((sl + 1) % 4, 0, 0))
        if extra: merge(f, extra(sl, 1))
        if sl == 3 and tail: f.setdefault(len(M) - 2, []).extend(tail)
        bp = barpos[0]
        if bp < 0:
            a("s_waitcnt lgkmcnt(0)\n" + (bar(sl) if bar else "s_barrier"))
        else:
            a("s_waitcnt lgkmcnt(0)")
            moved = []
            for k in range(bp + 1):
                keep = [x for x in f.get(k, []) if not x.startswith("ds_read")]
                moved += [x for x in f.get(k, []) if x.startswith("ds_read")]
                f[k] = keep
            f[bp] = f.get(bp, []) + [bar(sl) if bar else "s_barrier"] + moved
        a("\n".join(interleave(M, f)))

def loop4(a, n4, reads, mfmas, s_cnt, rdspan=0.5, extra=None):
    L = a.label("k")
    a(f"s_mov_b32 s{s_cnt}, {n4}\n.p2align 6\n{L}:")
    body4(a, reads, mfmas, rdspan, tail=[f"s_sub_u32 s{s_cnt}, s{s_cnt}, 1", f"s_cmp_lg_u32 s{s_cnt}, 0"], extra=extra)
    a(f"s_cbranch_scc1 {L}")
```

```python
from gen_common import *
import struct
def fl(x): return f"{struct.unpack('<I', struct.pack('<f', x))[0]:#x}"
LOG2E = 1.4426950408889634
K0 = -2 * 0.7978845608028654 * LOG2E
K1C = K0 * 0.044715

def gelu_pairs(a, regs, T, CK0, CK1, CONE, group=4):
    for g0 in range(0, len(regs), group):
        G = regs[g0:g0 + group]
        tt = [T + 2 * i for i in range(len(G))]
        for r, t in zip(G, tt): a(f"v_pk_mul_f32 {vr(t,2)}, {vr(r,2)}, {vr(r,2)}")
        for r, t in zip(G, tt): a(f"v_pk_fma_f32 {vr(t,2)}, {vr(t,2)}, {vr(CK1,2)}, {vr(CK0,2)}")
        for r, t in zip(G, tt): a(f"v_pk_mul_f32 {vr(t,2)}, {vr(t,2)}, {vr(r,2)}")
        for r, t in zip(G, tt): a(f"v_exp_f32 v{t}, v{t}\nv_exp_f32 v{t+1}, v{t+1}")
        for r, t in zip(G, tt): a(f"v_pk_add_f32 {vr(t,2)}, {vr(t,2)}, {vr(CONE,2)}")
        for r, t in zip(G, tt): a(f"v_rcp_f32 v{t}, v{t}\nv_rcp_f32 v{t+1}, v{t+1}")
        for r, t in zip(G, tt): a(f"v_pk_mul_f32 {vr(r,2)}, {vr(r,2)}, {vr(t,2)}")

def gen_k1(dev=False, rot=True):
    a = Asm('1')
    NST, STG = 3, 49152
    XTRA = NST * STG
    LDS = XTRA + 5120
    prologue(a, dict(x=6, w_in=8, ws=10, dbg=12, hid_re=14, hid_im=48, gate_w=50), "L1_end")
    WS, XS, WI = 16, 20, 44
    RB, CB = 24, 25
    a("s_and_b32 s26, s5, 3\ns_waitcnt lgkmcnt(0)")
    srd(a, WS, 10, 0x4000000)
    srd(a, XS, 6, SIZE['x'])
    if dev: stamp(a, 60, 0, WS, 30)
    a("s_cmp_ge_u32 s4, 28\ns_cbranch_scc1 L1_side")
    tile_4x7(a, RB, CB, 37)
    a("s_cmp_lt_u32 s5, 4\ns_cbranch_scc1 L1_cons")
    srd(a, WI, 8, SIZE['w_in'])
    VX, VW = 3, 16
    S_LDS, S_KS, S_KX, S_KW, S_CNT = 30, 32, 33, 34, 35
    a(f"s_lshl_b32 s40, s{RB}, 18\ns_lshl_b32 s37, s26, 5")
    kc_dma_voff(a, VX, 4, 40, 37, 11, 10, 11, 12, 13, perm=True)
    a(f"""
    v_lshrrev_b32 v10, 5, v0          ; kb
    v_bfe_u32 v11, v0, 4, 1           ; half
    v_and_b32 v12, 15, v0
    v_mul_u32_u24 v11, 3584, v11
    s_lshl_b32 s37, s{CB}, 8
    v_add_u32 v11, s37, v11
    s_lshl_b32 s37, s26, 4
    v_add_u32 v13, s37, v10           ; 16w + kb
    v_mul_u32_u24 v13, 7168, v13
    v_add_u32 v11, v11, v13
    v_lshlrev_b32 v10, 1, v10
    v_xor_b32 v12, v12, v10
    """)
    for jj in range(8):
        hx = (2 * (jj & 1) + 4 * ((jj >> 2) & 1)) << 1
        a(f"v_xor_b32 v14, {hx}, v12\nv_lshlrev_b32 v14, 4, v14\nv_add_u32 v14, v14, v11")
        a(f"v_add_u32 v{VW+jj}, {2*jj*7168 - 1024*(jj&3)}, v14")
    a(f"s_lshl_b32 s41, s26, 12\ns_lshl_b32 s42, s26, 13\ns_add_u32 s42, s42, 16384\ns_add_u32 s43, s42, 4096\ns_mov_b32 s{S_LDS}, 0")
    a(f"s_lshl_b32 s{S_KS}, s3, 1" if rot else f"s_mov_b32 s{S_KS}, 0")
    def dma():
        L = [f"s_add_u32 m0, s{S_LDS}, s41", f"s_lshl_b32 s{S_KX}, s{S_KS}, 7", f"s_mul_i32 s{S_KW}, s{S_KS}, {64*7168}"]
        for j in range(4): L.append(f"buffer_load_dwordx4 v{VX+j}, s[{XS}:{XS+3}], s{S_KX} offen offset:{1024*j} lds")
        for h in range(2):
            L += [f"s_add_u32 m0, s{S_LDS}, s{42+h}", "s_nop 0"]
            for j in range(4): L.append(f"buffer_load_dwordx4 v{VW+4*h+j}, s[{WI}:{WI+3}], s{S_KW} offen offset:{1024*j} lds")
        L += [f"s_add_u32 s{S_KS}, s{S_KS}, 1", f"s_and_b32 s{S_KS}, s{S_KS}, 15",
              f"s_add_u32 s{S_LDS}, s{S_LDS}, {STG}", f"s_cmp_eq_u32 s{S_LDS}, {STG*NST}", f"s_cselect_b32 s{S_LDS}, 0, s{S_LDS}"]
        a("\n".join(L))
    loader_loop(a, NST, 12, [16], dma, S_CNT)
    a("s_endpgm")

    a("L1_cons:")
    FR, A2, A1, AX, AW = 32, 128, 192, 2, 4
    def acc2(m, c): return A2 + (m * 4 + c) * 4
    def acc1(c, m): return A1 + (c * 4 + m) * 4
    def fx(buf, m): return FR + buf * 48 + m * 4
    def fw(buf, hf, c): return FR + buf * 48 + 16 + (hf * 4 + c) * 4
    def reads(kk, buf):
        L = [f"ds_read_b128 {vr(fx(buf,m),4)}, v{AX+kk} offset:{m*2048}" for m in range(4)]
        for hf in (1, 0):
            for c in range(4):
                for hh in range(2):
                    L.append(f"ds_read_b64_tr_b16 {vr(fw(buf,hf,c)+2*hh,2)}, v{AW+c} offset:{16384+(32*kk+4*hh)*512+hf*256}")
        return L
    def mfmas(buf):
        L = [f"{MF} {vr(acc2(m,c),4)}, {vr(fx(buf,m),4)}, {vr(fw(buf,1,c),4)}, {vr(acc2(m,c),4)}" for m in range(4) for c in range(4)]
        L += [f"{MF} {vr(acc1(c,m),4)}, {vr(fw(buf,0,c),4)}, {vr(fx(buf,m),4)}, {vr(acc1(c,m),4)}" for c in range(4) for m in range(4)]
        return L
    a("s_lshr_b32 s27, s26, 1\ns_and_b32 s28, s26, 1")
    NON = 8
    srd(a, WI, 12, 256)
    a(f"""
    s_cmp_lg_u32 s26, 0
    s_cbranch_scc1 L1_nononce
    s_memrealtime s[52:53]
    v_mov_b32 v{NON+2}, 0
    v_mov_b32 v{NON+3}, 0
    v_mov_b32 v12, 0
    s_waitcnt lgkmcnt(0)
    s_or_b32 s52, s52, 1
    v_mov_b32 v{NON}, s52
    v_mov_b32 v{NON+1}, s53
    s_mov_b64 exec, 1
    buffer_atomic_cmpswap_x2 {vr(NON,4)}, v12, s[{WI}:{WI+3}], 0 offen sc0 sc1
    s_mov_b64 exec, -1
    L1_nononce:
    """)
    kc_frag_addr(a, 12, 13, 14, 15, 16)
    a(f"""
    s_lshl_b32 s37, s27, 13
    v_add_u32 v{AX}, s37, v12
    v_add_u32 v{AX+1}, s37, v13
    v_lshrrev_b32 v15, 4, v0          ; g
    v_bfe_u32 v16, v0, 2, 2           ; r
    v_lshl_add_u32 v17, v15, 3, v16
    v_lshlrev_b32 v17, 9, v17
    v_and_b32 v18, 3, v0
    v_lshl_add_u32 v17, v18, 3, v17
    v_and_b32 v18, 1, v15
    v_lshl_add_u32 v16, v18, 2, v16   ; h
    s_lshl_b32 s37, s28, 2
    v_xor_b32 v16, s37, v16
    """)
    for c in range(4): a(f"v_xor_b32 v18, {c}, v16\nv_lshl_add_u32 v{AW+c}, v18, 5, v17")
    for i in range(128): a(f"v_mov_b32 v{A2+i}, 0")
    S_SLOT, S_DEL = 38, 39
    a(f"s_mov_b32 s{S_SLOT}, 0\ns_setprio 1\ns_barrier")
    if dev: stamp(a, 60, 1, WS, 30)
    a("\n".join(reads(0, 0)))
    consumer_loop(a, 16, NST, STG, reads, mfmas, [AX, AX+1] + [AW+c for c in range(4)], S_CNT, S_SLOT, S_DEL, rdspan=0.66)
    if dev: stamp(a, 60, 2, WS, 30)
    CK0, CK1, CONE = 20, 22, 24
    T = FR
    a(f"""
    v_mov_b32 v{CK0}, {fl(K0)}
    v_mov_b32 v{CK0+1}, {fl(K0)}
    v_mov_b32 v{CK1}, {fl(K1C)}
    v_mov_b32 v{CK1+1}, {fl(K1C)}
    v_mov_b32 v{CONE}, 1.0
    v_mov_b32 v{CONE+1}, 1.0
    s_waitcnt vmcnt(0) lgkmcnt(0)
    s_cmp_lg_u32 s26, 0
    s_cbranch_scc1 L1_nonce2
    v_or_b32 v12, v{NON}, v{NON+1}
    v_cmp_eq_u32 vcc, 0, v12
    v_mov_b32 v13, s52
    v_mov_b32 v14, s53
    v_cndmask_b32 v{NON}, v{NON}, v13, vcc
    v_cndmask_b32 v{NON+1}, v{NON+1}, v14, vcc
    v_mov_b32 v12, {XTRA}
    s_mov_b64 exec, 1
    ds_write_b64 v12, {vr(NON,2)}
    s_mov_b64 exec, -1
    L1_nonce2:
    s_nop 4
    """)
    gelu_pairs(a, [A2 + 2 * i for i in range(32)], T, CK0, CK1, CONE)
    a(f"s_waitcnt lgkmcnt(0)\ns_barrier\nv_mov_b32 v12, {XTRA}\nds_read_b64 v[28:29], v12")
    S, Q = T + 16, T + 32
    for m in range(4):
        for h in range(2):
            s, q = S + 4 * m + 2 * h, Q + 4 * m + 2 * h
            z = lambda c: vr(acc2(m, c) + 2 * h, 2)
            a(f"v_pk_add_f32 {vr(s,2)}, {z(0)}, {z(1)}\nv_pk_mul_f32 {vr(q,2)}, {z(0)}, {z(0)}")
            a(f"v_pk_add_f32 {vr(s,2)}, {vr(s,2)}, {z(2)}\nv_pk_fma_f32 {vr(q,2)}, {z(1)}, {z(1)}, {vr(q,2)}")
            a(f"v_pk_add_f32 {vr(s,2)}, {vr(s,2)}, {z(3)}\nv_pk_fma_f32 {vr(q,2)}, {z(2)}, {z(2)}, {vr(q,2)}")
            a(f"v_pk_fma_f32 {vr(q,2)}, {z(3)}, {z(3)}, {vr(q,2)}")
    a("s_nop 1")
    def dpp(d, s, ctl, bm): a(f"v_add_f32_dpp v{d}, v{s}, v{s} {ctl} row_mask:0xf bank_mask:{bm}")
    for B in (S, Q):
        for j in range(8): dpp(B + j, B + j, "row_ror:8", "0x3")
    for B in (S, Q):
        for j in range(8): dpp(B + j, B + j + 8, "row_ror:8", "0xc")
    for B in (S, Q):
        for j in range(4): dpp(B + j, B + j, "row_half_mirror", "0x5")
    for B in (S, Q):
        for j in range(4): dpp(B + j, B + j + 4, "row_half_mirror", "0xa")
    for ctl in ("quad_perm:[1,0,3,2]", "quad_perm:[2,3,0,1]"):
        for B in (S, Q):
            for j in range(4): dpp(B + j, B + j, ctl, "0xf")
    a("s_mov_b32 s52, 0xaaaaaaaa\ns_mov_b32 s53, 0xaaaaaaaa\ns_mov_b32 s54, 0xcccccccc\ns_mov_b32 s55, 0xcccccccc")
    for B in (S, Q):
        a(f"v_cndmask_b32 v{B}, v{B}, v{B+1}, s[52:53]\nv_cndmask_b32 v{B+2}, v{B+2}, v{B+3}, s[52:53]")
    a(f"v_cndmask_b32 v26, v{S}, v{S+2}, s[54:55]\nv_cndmask_b32 v27, v{Q}, v{Q+2}, s[54:55]")
    a(f"""
    v_bfe_u32 v18, v0, 3, 1
    v_lshlrev_b32 v18, 5, v18
    v_lshl_add_u32 v18, v15, 3, v18
    v_and_b32 v19, 7, v0
    v_add_u32 v18, v18, v19
    v_lshlrev_b32 v19, 4, v18
    s_mul_i32 s37, s{RB}, 28
    s_add_u32 s37, s37, s28
    s_lshl_b32 s37, s37, 11
    s_lshl_b32 s40, s27, 10
    s_add_u32 s37, s37, s40
    s_add_u32 s37, s37, {ST_OFF}
    s_lshl_b32 s40, s{CB}, 12
    s_add_u32 s40, s40, s37
    s_waitcnt lgkmcnt(0)
    buffer_store_dwordx4 v[26:29], v19, s[{WS}:{WS+3}], s40 offen sc1
    """)
    if dev: stamp(a, 60, 4, WS, 30)
    gelu_pairs(a, [A1 + 2 * i for i in range(32)], T, CK0, CK1, CONE)
    a(f"""
    s_mul_i32 s40, s{RB}, 14
    s_add_u32 s40, s40, s{CB}
    s_lshl_b32 s40, s40, 15
    s_lshl_b32 s41, s27, 14
    s_add_u32 s40, s40, s41
    s_lshl_b32 s41, s28, 7
    s_add_u32 s40, s40, s41
    s_add_u32 s40, s40, {Z1_OFF}
    s_add_u32 s41, s40, 8192
    v_bfe_u32 v12, v0, 2, 2
    v_lshlrev_b32 v12, 3, v12
    v_and_b32 v13, 3, v0
    v_add_u32 v12, v12, v13
    v_lshlrev_b32 v12, 8, v12
    v_and_b32 v13, 1, v15
    v_lshl_add_u32 v12, v13, 5, v12
    v_lshrrev_b32 v13, 1, v15
    v_lshl_add_u32 v12, v13, 4, v12
    """)
    k = 0
    for m in range(4):
        for cp in range(2):
            t = T + 16 + 4 * (k % 8); k += 1
            for h in range(2):
                z = acc1(2 * cp + h, m)
                a(f"v_cvt_pk_bf16_f32 v{t+2*h}, v{z}, v{z+1}\nv_cvt_pk_bf16_f32 v{t+2*h+1}, v{z+2}, v{z+3}")
            a(f"s_nop 1\nv_permlane16_swap_b32 v{t}, v{t+2}\nv_permlane16_swap_b32 v{t+1}, v{t+3}")
            a(f"buffer_store_dwordx4 {vr(t,4)}, v12, s[{WS}:{WS+3}], s{40 + (m>>1)} offen offset:{1024*(m&1) + 64*cp}")
    if dev: stamp(a, 60, 5, WS, 30)
    G = A1
    a(f"v_readfirstlane_b32 s52, v28\nv_readfirstlane_b32 s53, v29\ns_mov_b32 s56, 0\nL1_poll:\ns_mov_b32 s40, s37")
    for i in range(14):
        a(f"buffer_load_dwordx4 {vr(G+4*i,4)}, v19, s[{WS}:{WS+3}], s40 offen sc1\ns_add_u32 s40, s40, 4096")
    a("s_mov_b64 s[54:55], -1\ns_waitcnt vmcnt(0)")
    for i in range(14):
        a(f"v_cmp_eq_u64 vcc, s[52:53], {vr(G+4*i+2,2)}\ns_and_b64 s[54:55], s[54:55], vcc")
    a(f"""
    s_cmp_eq_u64 s[54:55], -1
    s_cbranch_scc1 L1_ok
    s_sleep 4
    s_add_u32 s56, s56, 1
    s_cmp_lt_u32 s56, 20000
    s_cbranch_scc1 L1_poll
    L1_ok:
    """)
    for i in range(1, 14): a(f"v_pk_add_f32 {vr(G,2)}, {vr(G,2)}, {vr(G+4*i,2)}")
    a(f"""
    s_lshl_b32 s40, s26, 9
    s_add_u32 s40, s40, {XTRA+1024}
    v_lshlrev_b32 v13, 3, v0
    v_add_u32 v13, s40, v13
    ds_write_b64 v13, {vr(G,2)}
    v_xor_b32 v13, 512, v13
    s_waitcnt lgkmcnt(0)
    s_barrier
    ds_read_b64 {vr(G+2,2)}, v13
    s_add_u32 s40, s40, 2048
    v_lshlrev_b32 v14, 2, v18
    v_add_u32 v14, s40, v14
    v_lshlrev_b32 v13, 5, v15
    v_add_u32 v13, s40, v13
    s_waitcnt lgkmcnt(0)
    v_pk_add_f32 {vr(G,2)}, {vr(G,2)}, {vr(G+2,2)}
    v_mul_f32 v{G}, {fl(1/1792)}, v{G}
    v_mul_f32 v{G+1}, {fl(1/1792)}, v{G+1}
    v_fma_f32 v{G+1}, -v{G}, v{G}, v{G+1}
    v_max_f32 v{G+1}, 0, v{G+1}
    v_add_f32 v{G+1}, {fl(1e-5)}, v{G+1}
    v_rsq_f32 v{G+1}, v{G+1}
    s_nop 0
    v_mul_f32 v{G}, v{G}, v{G+1}
    v_sub_f32 v{G}, 0, v{G}
    ds_write_b32 v14, v{G+1}
    ds_write_b32 v14, v{G} offset:256
    s_waitcnt lgkmcnt(0)
    """)
    RR, BB = G + 8, G + 24
    for m in range(4):
        a(f"ds_read_b128 {vr(RR+4*m,4)}, v13 offset:{128*(m>>1)+16*(m&1)}")
        a(f"ds_read_b128 {vr(BB+4*m,4)}, v13 offset:{256+128*(m>>1)+16*(m&1)}")
    a(f"""
    s_lshl_b32 s40, s{CB}, 5
    s_lshl_b32 s41, s{RB}, 1
    s_add_u32 s40, s40, s41
    s_add_u32 s40, s40, s27
    s_lshl_b32 s40, s40, 14
    s_lshl_b32 s41, s28, 13
    s_add_u32 s40, s40, s41
    s_add_u32 s40, s40, {Z2_OFF}
    s_add_u32 s41, s40, 4096
    v_bfe_u32 v12, v0, 2, 1
    v_lshlrev_b32 v12, 4, v12
    v_bfe_u32 v16, v0, 3, 1
    v_lshl_add_u32 v12, v16, 2, v12
    v_and_b32 v17, 3, v0
    v_add_u32 v12, v12, v17
    v_lshlrev_b32 v12, 7, v12
    v_lshlrev_b32 v16, 1, v16
    v_bfe_u32 v17, v0, 1, 1
    v_add_u32 v16, v16, v17
    v_xor_b32 v16, v16, v15
    v_lshl_add_u32 v16, v16, 4, v12
    v_xor_b32 v17, 64, v16
    s_waitcnt lgkmcnt(0)
    """)
    k = 0
    for c in range(4):
        for q in range(2):
            t = T + 4 * (k % 8); k += 1
            for h in range(2):
                m = 2 * q + h; z = acc2(m, c)
                for d in range(2):
                    a(f"v_pk_fma_f32 {vr(z+2*d,2)}, {vr(z+2*d,2)}, {vr(RR+4*m+2*d,2)}, {vr(BB+4*m+2*d,2)}")
            for h in range(2):
                m = 2 * q + h; z = acc2(m, c)
                a(f"v_cvt_pk_bf16_f32 v{t+2*h}, v{z}, v{z+1}\nv_cvt_pk_bf16_f32 v{t+2*h+1}, v{z+2}, v{z+3}")
            a(f"buffer_store_dwordx4 {vr(t,4)}, v{16 + ((q ^ c) & 1)}, s[{WS}:{WS+3}], s{40 + (c>>1)} offen offset:{1024*(c&1)}")
    if dev:
        a("s_waitcnt vmcnt(0)"); stamp(a, 60, 3, WS, 30)
    a("s_endpgm")

    a("L1_side:")
    J, TY, HF = 52, 53, 54
    GW, HM = 56, 44
    a(f"""
    s_lshl_b32 s{J}, s3, 2
    s_add_u32 s{J}, s{J}, s4
    s_sub_u32 s{J}, s{J}, 28
    s_lshr_b32 s{TY}, s5, 1
    s_and_b32 s{HF}, s5, 1
    """)
    srd(a, GW, 50, SIZE['gate_w'])
    a(f"""
    v_and_b32 v6, 31, v0
    v_lshrrev_b32 v7, 5, v0
    s_mov_b32 s62, 1
    s_mov_b32 s63, 1
    v_lshlrev_b32 v2, 4, v6
    v_sub_u32 v3, 2034, v2
    v_mov_b32 v9, 2032
    v_cndmask_b32 v3, v3, v9, s[62:63]
    v_sub_u32 v4, 1010, v2
    v_add_u32 v5, 1024, v2
    v_mov_b32 v8, -1
    v_mov_b32 v9, 0xffff0000
    v_cndmask_b32 v8, v8, v9, s[62:63]
    v_mov_b32 v10, 0
    """)
    XD, GWR, EX, SX, SM, SE = 32, 96, 112, 208, 240, 248
    for ri, row in enumerate((512, 1536)):
        a(f"s_mov_b32 s40, {row*2048}")
        for sg in range(4): a(f"buffer_load_dwordx4 {vr(SX+16*ri+4*sg,4)}, v{2+sg}, s[{XS}:{XS+3}], s40 offen")
        for e in range(2): a(f"buffer_load_ushort v{SE+2*ri+e}, v10, s[{XS}:{XS+3}], s40 offen offset:{512+1024*e}")
    a(f"""
    s_lshl_b32 s40, s{J}, 4
    s_lshl_b32 s41, s5, 1
    s_add_u32 s64, s40, s41            ; e0
    s_lshl_b32 s40, s64, 11
    v_add_u32 v11, s40, v2
    s_mov_b32 s66, 0
    s_mov_b32 s67, -1
    v_mov_b32 v12, s14
    v_mov_b32 v13, s15
    v_mov_b32 v14, s48
    v_mov_b32 v15, s49
    v_cndmask_b32 v12, v12, v14, s[66:67]
    v_cndmask_b32 v13, v13, v15, s[66:67]
    v_add_co_u32 v12, vcc, v12, v11
    s_nop 1
    v_addc_co_u32 v13, vcc, 0, v13, vcc
    global_load_dwordx4 {vr(SM,4)}, v[12:13], off
    global_load_dwordx4 {vr(SM+4,4)}, v[12:13], off offset:2048
    """)
    for sg in range(4): a(f"buffer_load_dwordx4 {vr(GWR+4*sg,4)}, v{2+sg}, s[{GW}:{GW+3}], 0 offen")
    for e in range(2): a(f"buffer_load_ushort v{120+e}, v10, s[{GW}:{GW+3}], 0 offen offset:{512+1024*e}")
    a(f"""
    v_add_u32 v16, s64, v7
    v_mov_b32 v20, v16
    v_sub_u32 v21, 2048, v16
    v_sub_u32 v22, 1024, v16
    v_add_u32 v23, 1024, v16
    v_cmp_eq_u32 vcc, 0, v16
    v_mov_b32 v9, 2048
    s_nop 0
    v_cndmask_b32 v23, v23, v9, vcc
    """)
    for X in range(4):
        a(f"v_lshlrev_b32 v{24+X}, 11, v{20+X}")
        for sg in range(4):
            a(f"v_add_u32 v{128+sg}, v{24+X}, v{2+sg}\nbuffer_load_dwordx4 {vr(XD+16*X+4*sg,4)}, v{128+sg}, s[{XS}:{XS+3}], 0 offen")
        for e in range(2): a(f"buffer_load_ushort v{EX+2*X+e}, v{24+X}, s[{XS}:{XS+3}], 0 offen offset:{512+1024*e}")
    VM = 122
    VM = 196
    a(f"""
    s_cmp_lt_u32 s{TY}, 2
    s_cselect_b32 s{HM}, s14, s48
    s_cselect_b32 s{HM+1}, s15, s49
    s_mov_b32 s{HM+2}, {SIZE['hid_re']}
    s_mov_b32 s{HM+3}, 0x20000
    """)
    for jj in range(8):
        a(f"v_add_u32 v9, {2*jj}, v7\nv_xor_b32 v11, v6, v9\nv_lshlrev_b32 v11, 4, v11\nv_lshl_add_u32 v11, v9, 12, v11\nv_subrev_u32 v{VM+jj}, {1024*(jj&3)}, v11")
    S_MO, S_SL = 68, 69
    a(f"""
    s_lshl_b32 s{S_MO}, s{HF}, 8
    s_and_b32 s40, s{TY}, 1
    s_add_u32 s{S_MO}, s{S_MO}, s40
    s_lshl_b32 s{S_MO}, s{S_MO}, 11
    s_lshl_b32 s{S_SL}, s5, 13
    s_add_u32 s{S_SL}, s{S_SL}, 65536
    """)
    def mdma():
        for h in range(2):
            a(f"s_add_u32 m0, s{S_SL}, {4096*h}\ns_nop 0")
            for j in range(4): a(f"buffer_load_dwordx4 v{VM+4*h+j}, s[{HM}:{HM+3}], s{S_MO} offen offset:{1024*j} lds")
        a(f"s_add_u32 s{S_MO}, s{S_MO}, 65536\ns_xor_b32 s{S_SL}, s{S_SL}, 65536")
    mdma()

    def fix(base):
        L = base + 4
        for d in range(3): a(f"v_alignbit_b32 v9, v{L+d+1}, v{L+d}, 16\nv_cndmask_b32 v{L+d}, v{L+d}, v9, s[62:63]")
        a(f"v_lshrrev_b32 v9, 16, v{L+3}\nv_cndmask_b32 v{L+3}, v{L+3}, v9, s[62:63]")
        a(f"v_and_b32 v{base+12}, v8, v{base+12}")
    def gdot(dst, base):
        a(f"v_dot2_f32_bf16 v{dst}, v{base}, v{GWR}, 0")
        for i in range(1, 16): a(f"v_dot2_f32_bf16 v{dst}, v{base+i}, v{GWR+i}, v{dst}")
    def unpack(dst, base, sg, k):
        if sg in (0, 3): a(f"v_lshlrev_b32 v{dst}, 16, v{base+4*sg+k}\nv_and_b32 v{dst+1}, 0xffff0000, v{base+4*sg+k}")
        else: a(f"v_and_b32 v{dst}, 0xffff0000, v{base+4*sg+3-k}\nv_lshlrev_b32 v{dst+1}, 16, v{base+4*sg+3-k}")
    def padd(d, x, y): a(f"v_pk_add_f32 {vr(d,2)}, {vr(x,2)}, {vr(y,2)}")
    def psub(d, x, y): a(f"v_pk_add_f32 {vr(d,2)}, {vr(x,2)}, {vr(y,2)} neg_lo:[0,1] neg_hi:[0,1]")
    def red32(regs, tmp):
        a("s_nop 2")
        for sh in (8, 4, 2, 1):
            for r in regs: a(f"v_add_f32_dpp v{r}, v{r}, v{r} row_ror:{sh} row_mask:0xf bank_mask:0xf")
            if len(regs) < 3: a("s_nop 1")
        for i, r in enumerate(regs): a(f"v_mov_b32 v{tmp+i}, v{r}")
        a("s_nop 1")
        for i, r in enumerate(regs): a(f"v_permlane16_swap_b32 v{r}, v{tmp+i}")
        for i, r in enumerate(regs): a(f"v_add_f32 v{r}, v{r}, v{tmp+i}")
    def sigmoid(regs):
        for r in regs: a(f"v_mul_f32 v{r}, {fl(-LOG2E)}, v{r}")
        for r in regs: a(f"v_exp_f32 v{r}, v{r}")
        a("s_nop 0")
        for r in regs: a(f"v_add_f32 v{r}, 1.0, v{r}")
        for r in regs: a(f"v_rcp_f32 v{r}, v{r}")
        a("s_nop 0")
    UP, OUTP = 132, 164
    T1 = 124
    def U(X, sg): return UP + (X * 4 + sg) * 2
    def OUT(ty, sg_): return OUTP + (ty * 2 + sg_) * 4
    a("s_waitcnt vmcnt(32)")
    fix(GWR); fix(SX); fix(SX + 16)
    a("v_lshlrev_b32 v120, 16, v120\nv_lshlrev_b32 v121, 16, v121")
    gdot(28, SX); gdot(29, SX + 16)
    a("v_mov_b32 v30, 0\nv_mov_b32 v31, 0")
    for k in range(4):
        for X in range(2):
            for sg in range(4): unpack(U(X, sg), SX + 16 * X, sg, k)
        for sg in range(4):
            padd(U(2, sg), U(0, sg), U(1, sg)); psub(U(3, sg), U(0, sg), U(1, sg))
        padd(U(0, 0), U(2, 0), U(2, 1)); padd(U(0, 1), U(2, 2), U(2, 3)); psub(U(0, 2), U(3, 0), U(3, 1)); psub(U(0, 3), U(3, 2), U(3, 3))
        padd(U(1, 0), U(0, 0), U(0, 1)); psub(U(1, 1), U(0, 0), U(0, 1)); psub(U(1, 2), U(0, 2), U(0, 3)); padd(U(1, 3), U(0, 2), U(0, 3))
        padd(30, 30, U(1, 0))
        for ty in range(4): a(f"v_cvt_pk_bf16_f32 v{OUT(ty,0)+k}, v{U(1,ty)}, v{U(1,ty)+1}")
    for d in range(4):
        a(f"v_cndmask_b32 v{OUT(0,0)+d}, v{OUT(0,0)+d}, v{OUT(2,0)+d}, s[66:67]\nv_cndmask_b32 v{OUT(1,0)+d}, v{OUT(1,0)+d}, v{OUT(3,0)+d}, s[66:67]")
    a("v_sub_f32 v30, v30, v31")
    for i in range(2):
        a(f"v_dot2_f32_bf16 v{UP+i}, v{SM+4*i}, v{OUT(i,0)}, 0")
        for d in range(1, 4): a(f"v_dot2_f32_bf16 v{UP+i}, v{SM+4*i+d}, v{OUT(i,0)+d}, v{UP+i}")
    red32([28, 29, 30, UP, UP + 1], UP + 8)
    for i in range(4): a(f"v_lshlrev_b32 v{SE+i}, 16, v{SE+i}")
    a(f"""
    v_fmac_f32 v28, v{SE}, v120
    v_fmac_f32 v28, v{SE+1}, v121
    v_fmac_f32 v29, v{SE+2}, v120
    v_fmac_f32 v29, v{SE+3}, v121
    v_add_f32 v{UP+2}, v{SE}, v{SE+1}
    v_add_f32 v{UP+3}, v{SE+2}, v{SE+3}
    v_add_f32 v{UP+2}, v{UP+2}, v{UP+3}
    v_sub_f32 v{UP+3}, v{SE}, v{SE+1}
    v_sub_f32 v{UP+4}, v{SE+2}, v{SE+3}
    v_sub_f32 v{UP+3}, v{UP+3}, v{UP+4}
    v_add_f32 v30, v30, v{UP+2}                  ; VA[512]
    s_and_b32 s40, s5, 1
    s_cmp_eq_u32 s40, 0
    s_cselect_b32 s40, 1.0, -1.0                 ; (-1)^(e0/2), e0/2 = 8J + w
    v_mul_f32 v{UP+2}, s40, v{UP+2}
    v_mul_f32 v{UP+3}, s40, v{UP+3}
    v_cndmask_b32 v{UP+2}, v{UP+2}, 0, s[66:67]
    v_cndmask_b32 v{UP+3}, 0, v{UP+3}, s[66:67]
    v_add_f32 v{UP}, v{UP}, v{UP+2}
    v_sub_f32 v{UP+1}, v{UP+1}, v{UP+3}
    """)
    sigmoid([28, 29])
    a(f"""
    v_lshlrev_b32 v9, 12, v7
    s_lshl_b32 s40, s64, 2
    s_add_u32 s40, s40, {VA_OFF}
    s_mov_b64 exec, s[62:63]
    buffer_store_dwordx2 {vr(UP,2)}, v9, s[{WS}:{WS+3}], s40 offen
    s_mov_b32 s40, {VA_OFF + 2048}
    buffer_store_dword v30, v10, s[{WS}:{WS+3}], s40 offen
    s_mov_b32 s40, {G_OFF + 512*4}
    buffer_store_dword v28, v10, s[{WS}:{WS+3}], s40 offen
    s_mov_b32 s40, {G_OFF + 1536*4}
    buffer_store_dword v29, v10, s[{WS}:{WS+3}], s40 offen
    s_mov_b64 exec, -1
    s_waitcnt vmcnt(12)
    """)
    if dev: pass
    for X in range(4): fix(XD + 16 * X)
    GD = 208
    for X in range(4): gdot(GD + X, XD + 16 * X)
    for i in range(4): a(f"v_mov_b32 v{GD+4+i}, 0")
    for k in range(4):
        for X in range(4):
            for sg in range(4): unpack(U(X, sg), XD + 16 * X, sg, k)
        for sg in range(4):
            A_, B_, C_, D_, t1 = U(0, sg), U(1, sg), U(2, sg), U(3, sg), T1 + 2 * sg
            padd(t1, A_, B_); psub(B_, A_, B_); padd(A_, C_, D_); psub(D_, C_, D_)
            psub(C_, t1, A_); padd(A_, t1, A_); psub(t1, B_, D_); padd(D_, B_, D_)
        for sgm, src in enumerate((lambda sg: U(0, sg), lambda sg: U(2, sg))):
            padd(U(1, 0), src(0), src(1)); padd(U(1, 1), src(2), src(3))
            padd(U(1, 2), U(1, 0), U(1, 1)); psub(U(1, 3), U(1, 0), U(1, 1))
            padd(GD + 4 + 2 * sgm, GD + 4 + 2 * sgm, U(1, 2))
            a(f"v_cvt_pk_bf16_f32 v{OUT(0,sgm)+k}, v{U(1,2)}, v{U(1,2)+1}\nv_cvt_pk_bf16_f32 v{OUT(1,sgm)+k}, v{U(1,3)}, v{U(1,3)+1}")
        for sgm, src in enumerate((lambda sg: T1 + 2 * sg, lambda sg: U(3, sg))):
            psub(U(1, 0), src(0), src(1)); psub(U(1, 1), src(2), src(3))
            psub(U(1, 2), U(1, 0), U(1, 1)); padd(U(1, 3), U(1, 0), U(1, 1))
            a(f"v_cvt_pk_bf16_f32 v{OUT(2,sgm)+k}, v{U(1,2)}, v{U(1,2)+1}\nv_cvt_pk_bf16_f32 v{OUT(3,sgm)+k}, v{U(1,3)}, v{U(1,3)+1}")
    a(f"""
    s_lshl_b32 s40, s5, 1
    v_add_u32 v17, s40, v7
    v_xor_b32 v9, v6, v17
    v_lshlrev_b32 v9, 4, v9
    v_lshl_add_u32 v9, v17, 9, v9
    """)
    for i in range(8): a(f"ds_write_b128 v9, {vr(OUTP+4*i,4)} offset:{8192*i}")
    a(f"v_sub_f32 v{GD+4}, v{GD+4}, v{GD+5}\nv_sub_f32 v{GD+5}, v{GD+6}, v{GD+7}")
    red32([GD, GD + 1, GD + 2, GD + 3, GD + 4, GD + 5], UP)
    for i in range(8): a(f"v_lshlrev_b32 v{EX+i}, 16, v{EX+i}")
    for X in range(4):
        a(f"v_fmac_f32 v{GD+X}, v{EX+2*X}, v120\nv_fmac_f32 v{GD+X}, v{EX+2*X+1}, v121")
        a(f"v_add_f32 v{UP+X}, v{EX+2*X}, v{EX+2*X+1}\nv_sub_f32 v{UP+4+X}, v{EX+2*X}, v{EX+2*X+1}")
    E = UP + 8
    a(f"""
    v_add_f32 v{UP}, v{UP}, v{UP+1}
    v_add_f32 v{UP+2}, v{UP+2}, v{UP+3}
    v_sub_f32 v{UP+4}, v{UP+4}, v{UP+5}
    v_sub_f32 v{UP+6}, v{UP+6}, v{UP+7}
    v_add_f32 v{E}, v{UP}, v{UP+2}
    v_sub_f32 v{E+1}, v{UP}, v{UP+2}
    v_sub_f32 v{E+2}, v{UP+4}, v{UP+6}
    v_add_f32 v{E+3}, v{UP+4}, v{UP+6}
    v_add_f32 v{GD+4}, v{GD+4}, v{E}
    v_add_f32 v{GD+5}, v{GD+5}, v{E+1}
    v_cvt_pk_bf16_f32 v{GD+4}, v{GD+4}, v{GD+4}
    v_cvt_pk_bf16_f32 v{GD+5}, v{GD+5}, v{GD+5}
    """)
    sigmoid([GD, GD + 1, GD + 2, GD + 3])
    a(f"v_lshlrev_b32 v9, 2, v17\nv_add_u32 v9, {XTRA+256}, v9\nv_lshlrev_b32 v11, 1, v16")
    for X in range(4): a(f"v_lshlrev_b32 v{20+X}, 2, v{20+X}")
    a(f"s_mov_b64 exec, s[62:63]\ns_mov_b32 s40, {G_OFF}\ns_mov_b32 s41, {CV_OFF}")
    for i in range(4): a(f"ds_write_b32 v9, v{E+i} offset:{64*i}")
    for X in range(4): a(f"buffer_store_dword v{GD+X}, v{20+X}, s[{WS}:{WS+3}], s40 offen")
    for s_ in range(2): a(f"buffer_store_short v{GD+4+s_}, v11, s[{WS}:{WS+3}], s41 offen offset:{1024*s_}")
    a("s_mov_b64 exec, -1\ns_waitcnt lgkmcnt(0)\ns_barrier")
    if dev: stamp(a, 60, 1, WS, 30)
    AF, BF, INI, ACCS, RA = 32, 96, 128, 136, 12
    a(f"""
    v_and_b32 v6, 15, v0
    v_lshrrev_b32 v7, 4, v0
    v_xor_b32 v9, v6, v7
    v_lshlrev_b32 v9, 4, v9
    v_lshl_add_u32 v9, v6, 9, v9
    s_lshl_b32 s40, s{TY}, 14
    v_add_u32 v9, s40, v9
    """)
    for k in range(4): a(f"v_xor_b32 v{RA+k}, {64*k}, v9")
    for sg_ in range(2):
        for ks in range(8): a(f"ds_read_b128 {vr(AF+(sg_*8+ks)*4,4)}, v{RA+(ks&3)} offset:{8192*sg_+256*(ks>>2)}")
    a(f"""
    s_and_b32 s40, s{TY}, 2
    s_lshl_b32 s40, s40, 6
    s_add_u32 s40, s40, {XTRA+256}
    v_lshlrev_b32 v11, 4, v7
    v_add_u32 v11, s40, v11
    ds_read_b128 {vr(INI,4)}, v11
    ds_read_b128 {vr(INI+4,4)}, v11 offset:64
    s_mov_b32 s40, 0
    s_cmp_eq_u32 s{TY}, 0
    s_cmov_b32 s40, 1.0
    s_cmp_eq_u32 s{TY}, 3
    s_cmov_b32 s40, -1.0
    v_and_b32 v11, 1, v0
    v_lshlrev_b32 v11, 31, v11
    v_or_b32 v11, 0x3f800000, v11
    v_mul_f32 v11, s40, v11
    s_lshl_b32 s40, s{TY}, 14
    s_lshl_b32 s41, s5, 13
    s_add_u32 s41, s41, 65536
    s_sub_u32 s40, s41, s40
    """)
    for k in range(4): a(f"v_add_u32 v{RA+k}, s40, v{RA+k}")
    a(f"""
    v_bfe_u32 v16, v0, 1, 1
    v_lshlrev_b32 v16, 4, v16
    v_bfe_u32 v17, v0, 2, 2
    v_lshl_add_u32 v16, v17, 2, v16
    v_and_b32 v18, 1, v0
    v_lshl_add_u32 v16, v18, 1, v16
    s_and_b32 s40, s{TY}, 1
    v_add_u32 v16, s40, v16
    v_lshlrev_b32 v16, 7, v16
    v_lshl_add_u32 v17, v17, 1, v18       ; swz
    s_and_b32 s40, s{J}, 3
    s_lshl_b32 s40, s40, 1
    v_lshrrev_b32 v18, 1, v7
    v_add_u32 v18, s40, v18
    v_xor_b32 v17, v17, v18
    v_lshl_add_u32 v16, v17, 4, v16
    v_and_b32 v18, 1, v7
    v_lshl_add_u32 v16, v18, 19, v16
    s_lshr_b32 s70, s{TY}, 1
    s_lshl_b32 s70, s70, 20
    s_lshl_b32 s40, s{HF}, 18
    s_add_u32 s70, s70, s40
    s_lshr_b32 s40, s{J}, 2
    s_lshl_b32 s40, s40, 14
    s_add_u32 s70, s70, s40
    s_add_u32 s70, s70, {AT_OFF}
    s_waitcnt lgkmcnt(0)
    """)
    for i in range(8): a(f"v_mul_f32 v{INI+i}, v11, v{INI+i}")
    a("s_barrier\ns_mov_b32 s71, 0\nL1_sloop:")
    a("s_cmp_eq_u32 s71, 7\ns_cbranch_scc1 L1_nodma")
    mdma()
    a("s_waitcnt vmcnt(9)\ns_branch L1_sgo\nL1_nodma:\ns_waitcnt vmcnt(1)\nL1_sgo:")
    for ks in range(8): a(f"ds_read_b128 {vr(BF+4*ks,4)}, v{RA+(ks&3)} offset:{256*(ks>>2)}")
    a("s_and_b32 s40, s71, 3\ns_lshl_b32 s40, s40, 12\ns_lshr_b32 s41, s71, 2\ns_lshl_b32 s41, s41, 17\ns_add_u32 s40, s40, s41\ns_add_u32 s40, s40, s70")
    for ks in range(8):
        a(f"s_waitcnt lgkmcnt({7-ks})")
        for sg_ in range(2):
            a(f"{MF} {vr(ACCS+4*sg_,4)}, {vr(AF+(sg_*8+ks)*4,4)}, {vr(BF+4*ks,4)}, {vr((INI if ks == 0 else ACCS)+4*sg_,4)}")
    for k in range(4): a(f"v_xor_b32 v{RA+k}, 0x10000, v{RA+k}")
    a("s_nop 5")
    P = 144
    a(f"""
    v_cvt_pk_bf16_f32 v{P}, v{ACCS}, v{ACCS+1}
    v_cvt_pk_bf16_f32 v{P+1}, v{ACCS+2}, v{ACCS+3}
    v_cvt_pk_bf16_f32 v{P+2}, v{ACCS+4}, v{ACCS+5}
    v_cvt_pk_bf16_f32 v{P+3}, v{ACCS+6}, v{ACCS+7}
    s_nop 1
    v_permlane16_swap_b32 v{P}, v{P+2}
    v_permlane16_swap_b32 v{P+1}, v{P+3}
    buffer_store_dwordx4 {vr(P,4)}, v16, s[{WS}:{WS+3}], s40 offen
    s_add_u32 s71, s71, 1
    s_cmp_lt_u32 s71, 8
    s_cbranch_scc1 L1_sloop
    """)
    if dev:
        a("s_waitcnt vmcnt(0)"); stamp(a, 60, 3, WS, 30)
    a("L1_end:\ns_endpgm")
    return ("k1_kernel", a.text(), 256, 256, 80), ("k1_kernel", 256, 512, LDS)
```

```python
import sys, struct
from gen_common import *
from gen_k1 import gelu_pairs, fl, LOG2E, K0, K1C

P = dict(x=64, seq_re=66, seq_im=68, hid_re=70, hid_im=72, bx=74, w_in=76, w_sp=78, b_sp=80, w_out=82, gate_w=84, out=86, dbg=88, ws=90)
NONCE = 92
WS = 16
XTRA = 147456
SPIN = 100000

class VM:
    def __init__(self, a): self.a, self.q = a, []
    def issue(self, tag, n): self.q += [tag] * n
    def clear(self): self.q = []
    def count(self, tag):
        if tag not in self.q: return None
        last = len(self.q) - 1 - self.q[::-1].index(tag)
        return len(self.q) - 1 - last
    def wait(self, tag):
        n = self.count(tag)
        if n is not None:
            self.a(f"s_waitcnt vmcnt({n})")
            self.q = self.q[len(self.q) - n:]

def run_loader(a, vm, nst, nsteps, first, issue_stage, s_cnt, post=None, switch=None, unroll=1):
    for s in range(first, nst): issue_stage(s)
    s = 0
    steady = None
    def one(s):
        vm.wait(s + 1); a("s_barrier")
        if s + nst < nsteps:
            if switch and (s + nst) in switch: switch[s + nst]()
            issue_stage(s + nst)
        elif post: post(s)
    bounds = sorted([k - nst for k in (switch or {})] + [nsteps - nst])
    while s < nsteps:
        nb = min([b for b in bounds if b > s], default=None)
        rel = [t - s if isinstance(t, int) else t for t in vm.q]
        if nb is not None and steady == rel and nb - s >= 2 * unroll and not (switch and (s + nst) in switch):
            L = a.label("ld")
            n = (nb - s) // unroll
            a(f"s_mov_b32 s{s_cnt}, {n}\n{L}:")
            for u in range(unroll): one(s + u)
            a(f"s_sub_u32 s{s_cnt}, s{s_cnt}, 1\ns_cmp_lg_u32 s{s_cnt}, 0\ns_cbranch_scc1 {L}")
            assert [t - (s + unroll) if isinstance(t, int) else t for t in vm.q] == rel
            s = s + n * unroll
            vm.q = [t + s if isinstance(t, int) else t for t in rel]
            steady = None
        else:
            steady = rel
            one(s); s += 1

def get_nonce(a, vt, issued=False):
    L = a.label("nn"); D = a.label("nd")
    srd(a, 44, P['dbg'], 256)
    a(f"s_mov_b32 s56, 0\nv_mov_b32 v{vt+2}, 0")
    if issued:
        a(f"s_branch {L}_c")
    a(f"{L}:\nbuffer_load_dwordx2 {vr(vt,2)}, v{vt+2}, s[44:47], 0 offen sc1\n{L}_c:\ns_waitcnt vmcnt(0)")
    a(f"""
    v_readfirstlane_b32 s{NONCE}, v{vt}
    v_readfirstlane_b32 s{NONCE+1}, v{vt+1}
    s_add_u32 s56, s56, 1
    s_cmp_lg_u32 s{NONCE}, 0
    s_cbranch_scc1 {D}
    s_cmp_lt_u32 s56, {SPIN}
    s_cbranch_scc1 {L}
    {D}:
    """)

def flag_load(a, s_off, vt, n):
    a(f"v_and_b32 v{vt+2}, {31 if n > 16 else 15}, v0\nv_min_u32 v{vt+2}, {n-1}, v{vt+2}\nv_lshlrev_b32 v{vt+2}, 6, v{vt+2}")
    a(f"s_mov_b32 exec_hi, 0\ns_mov_b32 exec_lo, {(1 << n) - 1:#x}")
    a(f"buffer_load_dwordx2 {vr(vt,2)}, v{vt+2}, s[{WS}:{WS+3}], s{s_off} offen sc1\ns_mov_b64 exec, -1")

def poll_flags(a, s_off, vt, n, issued=False, sleep=2):
    L = a.label("pf"); D = a.label("pd")
    a(f"s_mov_b32 s56, 0")
    if issued: a(f"s_branch {L}_c")
    a(f"{L}:")
    flag_load(a, s_off, vt, n)
    a(f"""
    {L}_c:
    s_waitcnt vmcnt(0)
    v_cmp_eq_u64 vcc, s[{NONCE}:{NONCE+1}], {vr(vt,2)}
    s_and_b32 s54, vcc_lo, {(1 << n) - 1:#x}
    s_cmp_eq_u32 s54, {(1 << n) - 1:#x}
    s_cbranch_scc1 {D}
    s_sleep {sleep}
    s_add_u32 s56, s56, 1
    s_cmp_lt_u32 s56, {SPIN}
    s_cbranch_scc1 {L}
    {D}:
    """)

CNT = 155648
def set_flag(a, s_off, vt, cnt, nw):
    D = a.label("sf")
    a(f"""
    v_mov_b32 v{vt}, s{NONCE}
    v_mov_b32 v{vt+1}, s{NONCE+1}
    v_mov_b32 v{vt+2}, s{NONCE}
    v_mov_b32 v{vt+3}, s{NONCE+1}
    v_mov_b32 v{vt+4}, {CNT + 4*cnt}
    v_mov_b32 v{vt+5}, 1
    s_mov_b64 exec, 1
    s_waitcnt vmcnt(0)
    ds_add_rtn_u32 v{vt+5}, v{vt+4}, v{vt+5}
    s_mov_b64 exec, 15
    v_lshlrev_b32 v{vt+4}, 4, v0
    s_waitcnt lgkmcnt(0)
    v_readfirstlane_b32 s54, v{vt+5}
    s_cmp_lg_u32 s54, {nw-1}
    s_cbranch_scc1 {D}
    buffer_store_dwordx4 {vr(vt,4)}, v{vt+4}, s[{WS}:{WS+3}], s{s_off} offen sc1
    {D}:
    s_mov_b64 exec, -1
    """)

def gen(dev=False, rot=True, pf=True, pfstart=19, wpf='cons', psleep=2, dbgwg=8, cpf=4, rs4=0.7, p4mode='', osc='', pad=0, touch=0, rs3=0.5, rs1=0.7, upos=(0, 4, 8, 12), cuts=(0, 3, 7, 10, 14), usc=' sc1', wsoff=0, npf=10, seg=(6, 2, 3, 5), hsc=" sc1", wsc=" sc1"):
    a = Asm('1')
    def st(slot, vt=30):
        if dev == 2:
            L = a.label("st")
            sl = {14: 13, 13: 15}.get(slot, slot)
            sl = [0, 1, 2, 4, 5, 6, 3, 14, 7, 8, 9, 10, 11, 12, 13].index(slot) if slot in (0,1,2,4,5,6,3,14,7,8,9,10,11,12,13) else None
            if sl is None or sl in (5,): return
            if sl > 5: sl -= 1
            a(f"s_or_b32 s60, s5, s2\ns_cmp_lg_u32 s60, {dbgwg}\ns_cbranch_scc1 {L}\ns_memrealtime s[60:61]\ns_mov_b32 s96, s88\ns_mov_b32 s97, s89\ns_movk_i32 s98, 256\ns_mov_b32 s99, 0x20000\ns_waitcnt lgkmcnt(0)")
            a(f"v_mov_b32 v{vt}, s60\nv_mov_b32 v{vt+1}, 0\nbuffer_store_dword v{vt}, v{vt+1}, s[96:99], 0 offen offset:{8+4*sl}\n{L}:")
        elif dev: stamp(a, 60, slot, WS, vt)
    a(f"""
    s_cmp_ge_u32 s2, 256
    s_cbranch_scc1 L_end
    s_load_dwordx16 s[64:79], s[0:1], 0
    s_load_dwordx8 s[80:87], s[0:1], 64
    s_load_dwordx4 s[88:91], s[0:1], 96
    v_lshrrev_b32 v1, 6, v0
    s_and_b32 s3, s2, 7
    v_readfirstlane_b32 s5, v1
    s_lshr_b32 s4, s2, 3
    v_and_b32 v0, 63, v0
    s_and_b32 s26, s5, 3
    s_lshr_b32 s27, s26, 1
    s_and_b32 s28, s26, 1
    s_waitcnt lgkmcnt(0)
    """)
    srd(a, WS, P['ws'], 0x4000000, off=wsoff)
    XS, S2, S3 = 20, 44, 48
    RB, CB = 24, 25
    srd(a, XS, P['x'], SIZE['x'])
    a(f"""
    s_or_b32 s37, s2, s5
    s_cmp_lg_u32 s37, 0
    s_cbranch_scc1 L_nopub
    s_memrealtime s[52:53]
    """)
    srd(a, S2, P['dbg'], 256)
    a(f"""
    v_mov_b32 v4, 0
    s_waitcnt lgkmcnt(0)
    s_or_b32 s52, s52, 1
    v_mov_b32 v2, s52
    v_mov_b32 v3, s53
    s_mov_b64 exec, 1
    buffer_store_dwordx2 v[2:3], v4, s[{S2}:{S2+3}], 0 offen sc1
    s_mov_b64 exec, -1
    L_nopub:
    """)
    a(f"v_mov_b32 v2, {CNT}\nv_mov_b32 v4, 0\nv_mov_b32 v5, 0\nv_mov_b32 v6, 0\nv_mov_b32 v7, 0\nds_write_b128 v2, v[4:7]\nds_write_b128 v2, v[4:7] offset:16")
    st(0)
    a("s_cmp_ge_u32 s4, 28\ns_cbranch_scc1 L_side")
    tile_4x7(a, RB, CB, 37)
    a("s_cmp_lt_u32 s5, 4\ns_cbranch_scc1 L1_cons")

    NST1, STG1 = 4, 32768
    srd(a, S2, P['w_in'], SIZE['w_in'])
    VX, VW = 16, 20
    S_LDS, S_LO, S_KS, S_KX, S_KW, S_CNT, S_TMP = 30, 31, 32, 33, 34, 35, 36
    S_WC = 43
    a(f"s_lshl_b32 s40, s{RB}, 18\ns_lshl_b32 s37, s26, 5")
    kc_dma_voff(a, VX, 4, 40, 37, 11, 10, 11, 12, 13, perm=True)
    a(f"""
    v_lshrrev_b32 v10, 4, v0          ; kq
    v_and_b32 v12, 15, v0
    s_lshl_b32 s37, s26, 4
    v_add_u32 v13, s37, v10
    v_mul_u32_u24 v13, 7168, v13
    s_lshl_b32 s37, s{CB}, 8
    v_add_u32 v11, s37, v13
    v_lshlrev_b32 v10, 1, v10
    v_xor_b32 v12, v12, v10
    """)
    for jj in range(4):
        a(f"v_xor_b32 v14, {8*(jj>>1)}, v12\nv_lshlrev_b32 v14, 4, v14\nv_add_u32 v14, v14, v11")
        a(f"v_add_u32 v{VW+jj}, {4*jj*7168 - 1024*jj}, v14")
    a(f"s_lshl_b32 s{S_LO}, s26, 12\ns_mov_b32 s{S_LDS}, s{S_LO}\ns_movk_i32 s{S_WC}, 3584")
    a(f"s_lshl_b32 s{S_KS}, s3, 1" if rot else f"s_mov_b32 s{S_KS}, 0")
    vm = VM(a)
    state = dict(pf=False)
    def pfetch(tag):
        a(f"buffer_load_dwordx4 v[28:31], v24, s[{S3}:{S3+3}], s52 offen\ns_add_u32 s52, s52, s53")
        vm.issue("p", 1)
    def stage1(tag):
        L = [f"s_lshl_b32 s{S_KX}, s{S_KS}, 7", f"s_add_u32 m0, s{S_LO}, {(tag%4)*STG1}", f"s_mul_i32 s{S_KW}, s{S_KS}, {64*7168}"]
        for j in range(4): L.append(f"buffer_load_dwordx4 v{VX+j}, s[{XS}:{XS+3}], s{S_KX} offen offset:{1024*j} lds")
        L += [f"s_add_u32 m0, s{S_LO}, {(tag%4)*STG1 + 16384}", f"s_add_u32 s{S_KW}, s{S_KW}, s{S_WC}"]
        for j in range(4): L.append(f"buffer_load_dwordx4 v{VW+j}, s[{S2}:{S2+3}], s{S_KW} offen offset:{1024*j} lds")
        L += [f"s_add_u32 s{S_KS}, s{S_KS}, 1", f"s_and_b32 s{S_KS}, s{S_KS}, 15"]
        a("\n".join(L)); vm.issue(tag, 8)
        if pf and tag == pfstart:
            for i in range(npf): pfetch(tag)
    for s in range(4): stage1(s)
    a(f"""
    s_mul_i32 s37, s3, 28
    s_add_u32 s37, s37, s4
    s_lshl_b32 s37, s37, 2
    s_add_u32 s37, s37, s26
    v_lshlrev_b32 v24, 4, v0
    s_mov_b32 s{S3}, s{P['w_sp']}
    s_mov_b32 s{S3+1}, s{P['w_sp']+1}
    s_mov_b32 s{S3+2}, {SIZE['w_sp']}
    s_mov_b32 s{S3+3}, 0x20000
    s_mul_i32 s52, s37, {npf*1024}
    s_movk_i32 s53, 1024
    """)
    NST3, STG3 = 4, 32768
    TS = 8
    VF, VT = 2, 3
    S_KT, S_FB, S_KF = 12, 13, 14
    def l3_common(rowshift, s_rowbyte, perm, init=True):
        a(f"s_lshl_b32 s37, s26, 5")
        kc_dma_voff(a, VT, 4, s_rowbyte, 37, rowshift, 10, 11, 12, 13, perm=perm)
        if init: a(f"s_lshl_b32 s{S_LO}, s26, 12\ns_mov_b32 s{S_LDS}, s{S_LO}")
        a(f"v_lshlrev_b32 v{VF}, 4, v0\nv_add_u32 v{VF}, s{S_LO}, v{VF}")
    def k3ops(vm, kmask, side=False):
        def Tpart(tag, slot, kt):
            a(f"s_add_u32 m0, s{S_LO}, {slot*STG3 + 16384}\ns_nop 0")
            for j in range(4): a(f"buffer_load_dwordx4 v{VT+j}, s[{TS}:{TS+3}], s{kt} offen offset:{1024*j} lds")
            vm.issue(tag, 4)
        def Fpart(tag):
            a(f"s_lshl_b32 s{S_KF}, s{S_KT}, 7\ns_add_u32 m0, s{S_LO}, {(tag%4)*STG3}\ns_add_u32 s{S_KF}, s{S_KF}, s{S_FB}")
            for j in range(4): a(f"buffer_load_dwordx4 v{VF}, s[{WS}:{WS+3}], s{S_KF} offen offset:{1024*j}{hsc} lds")
            vm.issue(tag, 4)
        def adv(): a(f"s_add_u32 s{S_KT}, s{S_KT}, 128\ns_and_b32 s{S_KT}, s{S_KT}, {kmask}")
        def full(tag): Fpart(tag); Tpart(tag, tag % 4, S_KT); adv()
        def preT():
            a(f"s_mov_b32 s41, s{S_KT}")
            for s in range(NST3):
                Tpart(s, s, 41)
                a(f"s_add_u32 s41, s41, 128\ns_and_b32 s41, s41, {kmask}")
        def Fonly(tag): Fpart(tag); adv()
        return full, (preT if side else Tpart), Fonly
    srd(a, TS, P['w_sp'], SIZE['w_sp'])
    a(f"s_lshl_b32 s40, s{RB}, 19")
    l3_common(12, 40, True, init=False)
    a(f"s_lshl_b32 s{S_FB}, s{CB}, 19\ns_add_u32 s{S_FB}, s{S_FB}, {Z2_OFF}")
    a(f"s_lshl_b32 s{S_KT}, s3, 9" if rot else f"s_mov_b32 s{S_KT}, 0")
    a(f"s_mov_b32 s41, s{S_KT}")
    full3, Tpart, Fonly = k3ops(vm, 4095)
    vm.wait(0); a("s_barrier")
    def sw_pf(): state['pf'] = bool(pf)
    def sw_z1(): a(f"s_mov_b32 s{S_WC}, 0")
    def post1(s):
        Tpart("T", s - 28, 41)
        a(f"s_add_u32 s41, s41, 128\ns_and_b32 s41, s41, 4095")
    run_loader(a, vm, NST1, 32, 4, stage1, S_CNT, post=post1, switch={16: sw_z1, pfstart: lambda: None} if pfstart != 16 else {16: sw_z1}, unroll=4)
    get_nonce(a, 24)
    a(f"s_lshl_b32 s40, s{CB}, 10\ns_add_u32 s40, s40, {FL1_OFF}")
    poll_flags(a, 40, 24, 16)
    vm.clear()
    Fonly(0); Fonly(1); vm.wait(0); a("s_barrier"); Fonly(2); Fonly(3)
    NW, YBASE = 14, 131072
    RB4, DB = 6, 7
    def tile4():
        a(f"""
        s_lshr_b32 s{RB4}, s3, 1
        s_lshl_b32 s{RB4}, s{RB4}, 2
        s_lshr_b32 s37, s4, 3
        s_add_u32 s{RB4}, s{RB4}, s37
        s_and_b32 s{DB}, s3, 1
        s_lshl_b32 s{DB}, s{DB}, 3
        s_and_b32 s37, s4, 7
        s_add_u32 s{DB}, s{DB}, s37
        """)
    WO = 20
    VU, VW4, VDW, WR = 8, 14, 16, 32
    S_UB, S_KU, S_KW4, S_KP = 33, 34, 40, 43
    def l4_setup():
        tile4()
        srd(a, WO, P['w_out'], SIZE['w_out'])
        a(f"""
        v_lshlrev_b32 v{VU}, 4, v0
        s_lshl_b32 s41, s26, 11
        v_add_u32 v{VDW}, s41, v{VU}
        v_add_u32 v{VDW+1}, {7*8192}, v{VDW}
        v_lshrrev_b32 v10, 3, v0
        v_and_b32 v11, 7, v0
        v_bfe_u32 v12, v0, 4, 1
        v_lshlrev_b32 v12, 1, v12
        v_xor_b32 v11, v11, v12
        v_lshlrev_b32 v11, 4, v11
        s_lshl_b32 s37, s26, 4
        v_add_u32 v10, s37, v10
        v_lshlrev_b32 v10, 11, v10
        s_lshl_b32 s37, s{DB}, 7
        v_add_u32 v10, s37, v10
        v_add_u32 v{VW4}, v10, v11
        v_xor_b32 v11, 64, v11
        v_add_u32 v10, {8*2048 - 1024}, v10
        v_add_u32 v{VW4+1}, v10, v11
        """)
        a(f"s_mul_i32 s{S_KS}, s3, 3" if rot else f"s_mov_b32 s{S_KS}, 0")
        a(f"s_add_u32 s{S_KP}, s{S_KS}, 14\ns_sub_u32 s37, s{S_KP}, 28\ns_cmp_ge_u32 s{S_KP}, 28\ns_cselect_b32 s{S_KP}, s37, s{S_KP}")
    def wreg(vm, lo, hi):
        for st_ in range(lo, hi):
            a(f"s_lshl_b32 s{S_KW4}, s{S_KP}, 17\ns_add_u32 s{S_KP}, s{S_KP}, 1\ns_cmp_eq_u32 s{S_KP}, 28\ns_cselect_b32 s{S_KP}, 0, s{S_KP}")
            for j in range(2): a(f"buffer_load_dwordx4 {vr(WR+8*st_+4*j,4)}, v{VW4+j}, s[{WO}:{WO+3}], s{S_KW4} offen offset:{1024*j}")
            vm.issue("W", 2)
    def lds_wait(addr, val, lab):
        a(f"""
        v_mov_b32 v10, {addr}
        s_mov_b32 s56, 0
        {lab}:
        ds_read_b32 v11, v10
        s_add_u32 s56, s56, 1
        s_waitcnt lgkmcnt(0)
        v_readfirstlane_b32 s37, v11
        s_cmp_ge_u32 s37, {val}
        s_cbranch_scc1 {lab}_d
        s_sleep 1
        s_cmp_lt_u32 s56, {SPIN*16}
        s_cbranch_scc1 {lab}
        {lab}_d:
        """)
    l4_setup()
    run_loader(a, vm, NST3, 32, 4, full3, S_CNT, post=lambda s_: wreg(vm, cuts[s_-28], cuts[s_-27]), unroll=4)
    lds_wait(CNT + 16, 4, "L3_stw")
    wreg(vm, cuts[4], 14)

    a("L4_load:")
    vm = VM(a)
    for st_ in range(NW):
        a(f"s_add_u32 m0, s41, {st_*8192}\ns_lshl_b32 s{S_KW4}, s{S_KS}, 17")
        for j in range(2): a(f"buffer_load_dwordx4 v{VW4+j}, s[{WO}:{WO+3}], s{S_KW4} offen offset:{1024*j} lds")
        a(f"s_add_u32 s{S_KS}, s{S_KS}, 1\ns_cmp_eq_u32 s{S_KS}, 28\ns_cselect_b32 s{S_KS}, 0, s{S_KS}")
    def Wwr(j_):
        for j in range(2): a(f"ds_write_b128 v{VDW + j_//7}, {vr(WR+8*j_+4*j,4)} offset:{(j_%7)*8192 + 1024*j}")
    a(f"""
    s_cmp_ge_u32 s{RB4}, 8
    s_cselect_b32 s42, -1, 1
    s_cselect_b32 s43, 1, 0
    s_lshl_b32 s37, s{RB4}, 7
    s_sub_u32 s52, 2048, s37
    s_cmp_ge_u32 s{RB4}, 8
    s_cselect_b32 s52, s52, s37
    s_lshl_b32 s53, s{DB}, 7
    s_sub_u32 s54, {2*960}, s53
    s_cmp_ge_u32 s{DB}, 8
    s_cselect_b32 s53, s54, s53
    s_cselect_b32 s54, 1, 0
    s_xor_b32 s43, s43, s54
    s_cmp_eq_u32 s43, 0
    s_mov_b32 s57, {YP_OFF}
    s_cmov_b32 s57, {YM_OFF}
    s_add_u32 s57, s57, s53
    s_mul_i32 s54, s26, 320
    s_movk_i32 s55, 7282
    """)
    for j in range(5):
        a(f"""
        v_add_u32 v10, s54, v0
        v_add_u32 v10, {64*j}, v10
        v_mul_u32_u24 v11, s55, v10
        v_lshrrev_b32 v11, 16, v11
        v_mul_u32_u24 v12, 9, v11
        v_sub_u32 v10, v10, v12
        v_min_u32 v11, 127, v11
        v_mul_lo_u32 v11, v11, s42
        v_add_u32 v11, s52, v11
        v_mul_u32_u24 v11, {YPITCH*2}, v11
        v_lshl_add_u32 v{18+j}, v10, 4, v11
        """)
    a(f"""
    s_lshr_b32 s40, s{RB4}, 2
    s_mov_b32 s53, 0
    s_cmp_eq_u32 s40, 1
    s_cmov_b32 s53, {2*512 + 1024}
    s_cmp_eq_u32 s40, 2
    s_cmov_b32 s53, {3*512 - 1024}
    s_cmp_eq_u32 s40, 3
    s_cmov_b32 s53, {1*512 + 2048}
    s_and_b32 s40, s40, 1
    s_cmp_eq_u32 s40, 1
    s_cselect_b32 s42, -1, 1
    s_lshl_b32 s40, s26, 5
    s_add_u32 s37, s37, s40
    v_and_b32 v10, 31, v0
    v_add_u32 v10, s37, v10
    v_mul_lo_u32 v11, v10, s42
    v_add_u32 v11, s53, v11
    """)
    for tv, idx in ((512, (SP_OFF - G_OFF)//4 + 2), (1536, (SP_OFF - G_OFF)//4 + 3), (1024, 1024)):
        a(f"v_mov_b32 v12, {idx}\nv_cmp_eq_u32 vcc, {tv}, v10\ns_nop 1\nv_cndmask_b32 v11, v11, v12, vcc")
    a(f"v_lshlrev_b32 v23, 2, v11")
    a(f"s_cmp_lg_u32 s26, 0\ns_cbranch_scc1 L4_lwait")
    a(f"s_mov_b32 s42, {FLY_OFF}")
    poll_flags(a, 42, 24, 32, sleep=8)
    a(f"s_lshl_b32 s42, s{RB4}, 10\ns_add_u32 s42, s42, {FL3_OFF}")
    poll_flags(a, 42, 24, 14, sleep=psleep)
    a("L4_lwait:\ns_waitcnt vmcnt(0)\ns_barrier")
    a(f"s_mul_i32 s40, s26, 5120\ns_add_u32 s40, s40, {YBASE}")
    for j in range(5):
        a(f"s_add_u32 m0, s40, {1024*j}\ns_nop 0\nbuffer_load_dwordx4 v{18+j}, s[{WS}:{WS+3}], s57 offen{hsc} lds")
    a(f"s_lshl_b32 s40, s26, 8\ns_add_u32 m0, s40, {YBASE + 20480}\ns_mov_b32 s40, {G_OFF}\nbuffer_load_dword v23, s[{WS}:{WS+3}], s40 offen{hsc} lds")
    a("s_barrier")
    for j in range(7): Wwr(j)
    a("s_waitcnt lgkmcnt(0)\ns_barrier")
    for j in range(7, 14): Wwr(j)
    a("s_waitcnt vmcnt(0) lgkmcnt(0)\ns_barrier\ns_barrier\ns_endpgm")

    a("L1_cons:")
    FR, A2, A1, AX, AW = 32, 128, 192, 2, 4
    EX1, EX2, RBL = 131072, 131072 + 4096, 131072 + 8192
    def acc2(m, c): return A2 + (m * 4 + c) * 4
    def acc1(c, m): return A1 + (c * 4 + m) * 4
    def fx(buf, m): return FR + buf * 32 + m * 4
    def fw(buf, c): return FR + buf * 32 + 16 + c * 4
    def reads1(sl, kk, buf):
        hi, so = 18 * (sl >> 1), (sl & 1) * 32768
        x = lambda m: [f"ds_read_b128 {vr(fx(buf,m),4)}, v{AX+hi+kk} offset:{so+m*2048}"]
        w = lambda c: [f"ds_read_b64_tr_b16 {vr(fw(buf,c)+2*hh,2)}, v{AW+hi+c} offset:{so+16384+(32*kk+4*hh)*256}" for hh in range(2)]
        return x(0) + w(0) + w(1) + x(1) + w(2) + x(2) + w(3) + x(3)
    def mfmasA(buf):
        return [f"{MF} {vr(acc2(m,c),4)}, {vr(fx(buf,m),4)}, {vr(fw(buf,c),4)}, {vr(acc2(m,c),4)}" for m in range(4) for c in range(4)]
    def mfmasB(buf):
        return [f"{MF} {vr(acc1(c,m),4)}, {vr(fw(buf,c),4)}, {vr(fx(buf,m),4)}, {vr(acc1(c,m),4)}" for c in range(4) for m in range(4)]
    KA0, KA1, VG = 12, 13, 15
    if cpf:
        a(f"""
        s_cmp_ge_u32 s4, {cpf}
        s_cbranch_scc1 L_nocpf
        s_getpc_b64 s[52:53]
        L_pc:
        s_sub_u32 s52, s52, L_pc-fused_kernel
        s_subb_u32 s53, s53, 0
        s_lshl_b32 s37, s4, 2
        s_add_u32 s37, s37, s26
        s_mul_i32 s37, s37, {((52 + 4*cpf - 1)//(4*cpf))*1024}
        v_lshlrev_b32 v16, 4, v0
        v_add_u32 v16, s37, v16
        v_min_u32 v16, L_end-fused_kernel-{((52 + 4*cpf - 1)//(4*cpf))*1024}, v16
        """)
        for i in range((52 + 4*cpf - 1)//(4*cpf)):
            a(f"global_load_dwordx4 v[96:99], v16, s[52:53] offset:{(i%4)*1024}")
            if i % 4 == 3: a("v_add_u32 v16, 4096, v16")
        a("L_nocpf:")
    if touch:
        a(f"s_cmp_ge_u32 s4, 1\ns_cbranch_scc1 L_notouch\nv_lshlrev_b32 v16, 16, v0")
        for nm, lo in (("w_sp", 0), ("w_sp", 1 << 22), ("w_out", 0), ("out", 0), ("w_in", 0), ("w_in", 1 << 22), ("x", 0)):
            srd(a, S3, P[nm], SIZE[nm])
            a(f"s_mov_b32 s37, {lo}\nbuffer_load_dword v96, v16, s[{S3}:{S3+3}], s37 offen")
        a(f"v_lshlrev_b32 v16, 21, v0\nv_add_u32 v16, {0x1ff000}, v16\ns_mov_b32 exec_hi, 0\ns_mov_b32 exec_lo, 0x8888\nbuffer_load_dword v96, v16, s[{WS}:{WS+3}], 0 offen\ns_mov_b64 exec, -1")
        a("L_notouch:")
    kc_frag_addr(a, KA0, KA1, 14, 15, 16)
    a(f"""
    s_lshl_b32 s37, s27, 13
    v_add_u32 v{AX}, s37, v{KA0}
    v_add_u32 v{AX+1}, s37, v{KA1}
    v_lshrrev_b32 v{VG}, 4, v0
    v_bfe_u32 v16, v0, 2, 2
    v_lshl_add_u32 v17, v{VG}, 3, v16
    v_lshlrev_b32 v17, 8, v17
    v_and_b32 v18, 3, v0
    v_lshl_add_u32 v17, v18, 3, v17
    v_and_b32 v18, 1, v{VG}
    v_lshl_add_u32 v16, v18, 2, v16
    s_lshl_b32 s37, s28, 2
    v_xor_b32 v16, s37, v16
    """)
    for c in range(4): a(f"v_xor_b32 v18, {c}, v16\nv_lshl_add_u32 v{AW+c}, v18, 5, v17")
    for i in range(6): a(f"v_add_u32 v{20+i}, 0x10000, v{2+i}")
    for i in range(128): a(f"v_mov_b32 v{A2+i}, 0")
    a(f"""
    s_lshl_b32 s37, s26, 10
    s_add_u32 s37, s37, {EX1}
    v_lshlrev_b32 v14, 4, v0
    v_add_u32 v14, s37, v14
    ds_write_b128 v14, {vr(A2,4)}
    ds_write_b128 v14, {vr(A2,4)} offset:4096
    """)
    srd(a, S3, P['b_sp'], SIZE['b_sp'])
    a(f"""
    v_bfe_u32 v11, v0, 2, 2
    v_lshlrev_b32 v11, 3, v11
    v_and_b32 v16, 3, v0
    v_add_u32 v11, v11, v16
    s_lshl_b32 s37, s{RB}, 7
    s_lshl_b32 s40, s27, 6
    s_add_u32 s37, s37, s40
    v_add_u32 v16, s37, v11
    v_lshlrev_b32 v1, 1, v16
    v_bfe_u32 v18, v0, 3, 1
    v_lshlrev_b32 v18, 5, v18
    v_lshl_add_u32 v18, v{VG}, 3, v18
    v_and_b32 v19, 7, v0
    v_add_u32 v18, v18, v19           ; row64
    v_lshlrev_b32 v19, 4, v18
    """)
    S_SLOT, S_DEL = 38, 39
    AD1 = [AX, AX+1] + [AW+c for c in range(4)]
    a(f"s_mov_b32 s{S_SLOT}, 0\ns_setprio 1\ns_waitcnt lgkmcnt(0)\ns_barrier")
    st(1)
    a("\n".join(reads1(0, 0, 0)))
    srd(a, S2, P['dbg'], 256)
    a(f"v_mov_b32 v10, 0\nbuffer_load_dwordx2 v[8:9], v10, s[{S2}:{S2+3}], 0 offen sc1")
    a("s_getpc_b64 s[58:59]\nL1_pc:\ns_add_u32 s58, s58, L1_b4-L1_pc\ns_addc_u32 s59, s59, 0")
    loop4(a, 4, reads1, mfmasA, S_CNT, rdspan=rs1)
    def callB(): a("s_swappc_b64 s[62:63], s[58:59]")
    st(2)
    CK0, CK1, CONE = 120, 122, 124
    T = 64
    def consts():
        a(f"v_mov_b32 v{CK0}, {fl(K0)}\nv_mov_b32 v{CK0+1}, {fl(K0)}\nv_mov_b32 v{CK1}, {fl(K1C)}\nv_mov_b32 v{CK1+1}, {fl(K1C)}\nv_mov_b32 v{CONE}, 1.0\nv_mov_b32 v{CONE+1}, 1.0")
    get_nonce(a, 8, issued=True)
    consts()
    a(f"v_mov_b32 v28, s{NONCE}\nv_mov_b32 v29, s{NONCE+1}")
    gelu_pairs(a, [A2 + 2 * i for i in range(32)], T, CK0, CK1, CONE)
    S, Q = T + 16, T + 32
    for m in range(4):
        for h in range(2):
            s_, q = S + 4 * m + 2 * h, Q + 4 * m + 2 * h
            z = lambda c: vr(acc2(m, c) + 2 * h, 2)
            a(f"v_pk_add_f32 {vr(s_,2)}, {z(0)}, {z(1)}\nv_pk_mul_f32 {vr(q,2)}, {z(0)}, {z(0)}")
            a(f"v_pk_add_f32 {vr(s_,2)}, {vr(s_,2)}, {z(2)}\nv_pk_fma_f32 {vr(q,2)}, {z(1)}, {z(1)}, {vr(q,2)}")
            a(f"v_pk_add_f32 {vr(s_,2)}, {vr(s_,2)}, {z(3)}\nv_pk_fma_f32 {vr(q,2)}, {z(2)}, {z(2)}, {vr(q,2)}")
            a(f"v_pk_fma_f32 {vr(q,2)}, {z(3)}, {z(3)}, {vr(q,2)}")
    a("s_nop 1")
    def dpp(d, s, ctl, bm): a(f"v_add_f32_dpp v{d}, v{s}, v{s} {ctl} row_mask:0xf bank_mask:{bm}")
    for B in (S, Q):
        for j in range(8): dpp(B + j, B + j, "row_ror:8", "0x3")
    for B in (S, Q):
        for j in range(8): dpp(B + j, B + j + 8, "row_ror:8", "0xc")
    for B in (S, Q):
        for j in range(4): dpp(B + j, B + j, "row_half_mirror", "0x5")
    for B in (S, Q):
        for j in range(4): dpp(B + j, B + j + 4, "row_half_mirror", "0xa")
    for ctl in ("quad_perm:[1,0,3,2]", "quad_perm:[2,3,0,1]"):
        for B in (S, Q):
            for j in range(4): dpp(B + j, B + j, ctl, "0xf")
    a("s_mov_b32 s52, 0xaaaaaaaa\ns_mov_b32 s53, 0xaaaaaaaa\ns_mov_b32 s54, 0xcccccccc\ns_mov_b32 s55, 0xcccccccc")
    for B in (S, Q):
        a(f"v_cndmask_b32 v{B}, v{B}, v{B+1}, s[52:53]\nv_cndmask_b32 v{B+2}, v{B+2}, v{B+3}, s[52:53]")
    def sibling(G, off, lab):
        a(f"""
        v_mov_b32 v{G+2}, 1
        v_mov_b32 v{G+3}, 1
        v_xor_b32 v17, 1024, v14
        ds_write_b128 v14, {vr(G,4)} offset:{off}
        s_mov_b32 s56, 0
        {lab}:
        ds_read_b128 {vr(G+4,4)}, v17 offset:{off}
        s_add_u32 s56, s56, 1
        s_waitcnt lgkmcnt(0)
        v_cmp_eq_u32 vcc, 1, v{G+6}
        s_cmp_eq_u64 vcc, -1
        s_cbranch_scc1 {lab}_ok
        s_cmp_lt_u32 s56, {SPIN*8}
        s_cbranch_scc1 {lab}
        {lab}_ok:
        """)
    a(f"v_cndmask_b32 v{T}, v{S}, v{S+2}, s[54:55]\nv_cndmask_b32 v{T+1}, v{Q}, v{Q+2}, s[54:55]")
    sibling(T, 0, "L1_sibA")
    a(f"""
    v_pk_add_f32 v[26:27], {vr(T,2)}, {vr(T+4,2)}
    s_mul_i32 s37, s{RB}, 14
    s_lshl_b32 s37, s37, 11
    s_lshl_b32 s40, s27, 10
    s_add_u32 s37, s37, s40
    s_add_u32 s37, s37, {ST_OFF}
    s_lshl_b32 s40, s{CB}, 11
    s_add_u32 s40, s40, s37
    s_cmp_eq_u32 s28, 0
    s_cselect_b32 exec_lo, -1, 0
    s_cselect_b32 exec_hi, 0, -1
    buffer_store_dwordx4 v[26:29], v19, s[{WS}:{WS+3}], s40 offen sc1
    s_mov_b64 exec, -1
    s_mul_i32 s40, s28, {7*2048}
    s_add_u32 s57, s37, s40
    """)
    st(4)
    callB()
    G = 96
    def gload():
        a("s_mov_b32 s40, s57")
        for i in range(7):
            a(f"buffer_load_dwordx4 {vr(G+4*i,4)}, v19, s[{WS}:{WS+3}], s40 offen offset:{2048*(i&1)} sc1")
            if i & 1: a("s_add_u32 s40, s40, 4096")
    gload()
    callB()
    st(5)
    a(f"s_mov_b32 s56, 0\ns_branch L1_chk\nL1_poll:")
    gload()
    a("L1_chk:\ns_mov_b64 s[54:55], -1\ns_waitcnt vmcnt(0)")
    for i in range(7):
        a(f"v_cmp_eq_u64 vcc, s[{NONCE}:{NONCE+1}], {vr(G+4*i+2,2)}\ns_and_b64 s[54:55], s[54:55], vcc")
    a(f"""
    s_cmp_eq_u64 s[54:55], -1
    s_cbranch_scc1 L1_ok
    s_sleep 2
    s_add_u32 s56, s56, 1
    s_cmp_lt_u32 s56, {SPIN}
    s_cbranch_scc1 L1_poll
    L1_ok:
    """)
    for i in range(1, 7): a(f"v_pk_add_f32 {vr(G,2)}, {vr(G,2)}, {vr(G+4*i,2)}")
    sibling(G, 4096, "L1_sibB")
    a(f"""
    s_lshl_b32 s40, s26, 9
    s_add_u32 s40, s40, {RBL}
    v_lshlrev_b32 v16, 2, v18
    v_add_u32 v16, s40, v16
    v_lshlrev_b32 v17, 5, v{VG}
    v_add_u32 v17, s40, v17
    v_pk_add_f32 {vr(G,2)}, {vr(G,2)}, {vr(G+4,2)}
    v_mul_f32 v{G}, {fl(1/1792)}, v{G}
    v_mul_f32 v{G+1}, {fl(1/1792)}, v{G+1}
    v_fma_f32 v{G+1}, -v{G}, v{G}, v{G+1}
    v_max_f32 v{G+1}, 0, v{G+1}
    v_add_f32 v{G+1}, {fl(1e-5)}, v{G+1}
    v_rsq_f32 v{G+1}, v{G+1}
    s_nop 0
    v_mul_f32 v{G}, v{G}, v{G+1}
    v_sub_f32 v{G}, 0, v{G}
    ds_write_b32 v16, v{G+1}
    ds_write_b32 v16, v{G} offset:256
    """)
    RR, BB = 96, 112
    for m in range(4):
        a(f"ds_read_b128 {vr(RR+4*m,4)}, v17 offset:{128*(m>>1)+16*(m&1)}")
        a(f"ds_read_b128 {vr(BB+4*m,4)}, v17 offset:{256+128*(m>>1)+16*(m&1)}")
    a(f"""
    s_lshl_b32 s40, s{CB}, 5
    s_lshl_b32 s41, s{RB}, 1
    s_add_u32 s40, s40, s41
    s_add_u32 s40, s40, s27
    s_lshl_b32 s40, s40, 14
    s_lshl_b32 s41, s28, 13
    s_add_u32 s40, s40, s41
    s_add_u32 s40, s40, {Z2_OFF}
    s_add_u32 s41, s40, 4096
    s_waitcnt lgkmcnt(0)
    """)
    k = 0
    for c in range(4):
        for q in range(2):
            t = T + 4 * (k % 8); k += 1
            for h in range(2):
                m = 2 * q + h; z = acc2(m, c)
                for d in range(2):
                    a(f"v_pk_fma_f32 {vr(z+2*d,2)}, {vr(z+2*d,2)}, {vr(RR+4*m+2*d,2)}, {vr(BB+4*m+2*d,2)}")
            for h in range(2):
                m = 2 * q + h; z = acc2(m, c)
                a(f"v_cvt_pk_bf16_f32 v{t+2*h}, v{z}, v{z+1}\nv_cvt_pk_bf16_f32 v{t+2*h+1}, v{z+2}, v{z+3}")
            a(f"buffer_store_dwordx4 {vr(t,4)}, v{KA0+q}, s[{WS}:{WS+3}], s{40 + (c>>1)} offen offset:{2048*(c&1)}{wsc}")
    st(6)
    callB()
    a(f"s_lshl_b32 s40, s{CB}, 4\ns_add_u32 s40, s40, s{RB}\ns_lshl_b32 s40, s40, 6\ns_add_u32 s40, s40, {FL1_OFF}")
    set_flag(a, 40, 96, 0, 4)
    for c in range(4): a(f"buffer_load_ushort v{104+c}, v1, s[{S3}:{S3+3}], 0 offen offset:{64*(c>>1)+8*(c&1)}")
    st(3)
    callB()
    st(14)
    if pad: a(f".rept {pad}\nv_add_u32 v96, 0x12345, v96\n.endr")
    consts()
    a("s_nop 1")
    gelu_pairs(a, [A1 + 2 * i for i in range(32)], T, CK0, CK1, CONE)
    ACC, FR3, AD = 128, 32, 2
    def acc(b, c): return ACC + (b * 4 + c) * 4
    def frag(buf, op, i): return FR3 + (buf * 8 + op * 4 + i) * 4
    def reads3(sl, kk, buf):
        order = [(0, 0)] + [(1, i) for i in range(4)] + [(0, i) for i in range(1, 4)]
        return [f"ds_read_b128 {vr(frag(buf,op,i),4)}, v{AD+4*(sl>>1)+2*op+kk} offset:{(sl&1)*32768+i*2048}" for op, i in order]
    def mfmas3(buf):
        return [f"{MF} {vr(acc(b,c),4)}, {vr(frag(buf,0,b),4)}, {vr(frag(buf,1,c),4)}, {vr(acc(b,c),4)}" for b in range(4) for c in range(4)]
    def cons3_addr(wf, wt):
        a(f"s_lshl_b32 s37, s{wf}, 13\nv_add_u32 v{AD}, s37, v{KA0}\nv_add_u32 v{AD+1}, s37, v{KA1}")
        a(f"s_lshl_b32 s37, s{wt}, 13\ns_add_u32 s37, s37, 16384\nv_add_u32 v{AD+2}, s37, v{KA0}\nv_add_u32 v{AD+3}, s37, v{KA1}")
    def cons3_hi():
        for i in range(4): a(f"v_add_u32 v{AD+4+i}, 0x10000, v{AD+i}")
    cons3_addr(28, 27); cons3_hi()
    a("s_waitcnt vmcnt(0)")
    for c in range(4): a(f"v_lshlrev_b32 v{104+c}, 16, v{104+c}")
    for b in range(4):
        for c in range(4):
            for r in range(4): a(f"v_mov_b32 v{acc(b,c)+r}, v{104+c}")
    def wpfetch():
        srd(a, S3, P['w_out'], SIZE['w_out'])
        a(f"s_mul_i32 s37, s3, 28\ns_add_u32 s37, s37, s4\ns_lshl_b32 s37, s37, 2\ns_add_u32 s37, s37, s26\ns_lshl_b32 s37, s37, 12\nv_lshlrev_b32 v16, 4, v0")
        for j in range(4): a(f"buffer_load_dwordx4 v[96:99], v16, s[{S3}:{S3+3}], s37 offen offset:{1024*j}")
    if wpf == 'cons': wpfetch()
    st(7)
    a(f"s_mov_b32 s{S_SLOT}, 0\ns_waitcnt lgkmcnt(0)\ns_barrier")
    st(8)
    a("\n".join(reads3(0, 0, 0)))
    loop4(a, 8, reads3, mfmas3, S_CNT, rdspan=rs3)
    st(9)
    a(f"""
    s_mul_i32 s37, s{RB}, 28
    s_lshl_b32 s40, s{CB}, 1
    s_add_u32 s37, s37, s40
    s_add_u32 s37, s37, s28
    s_lshl_b32 s37, s37, 14
    s_lshl_b32 s40, s27, 13
    s_add_u32 s37, s37, s40
    s_add_u32 s37, s37, {U_OFF}
    s_add_u32 s40, s37, 4096
    v_and_b32 v16, 15, v0
    v_and_b32 v17, 1, v{VG}
    v_lshlrev_b32 v17, 1, v17
    v_lshrrev_b32 v18, 1, v{VG}
    v_add_u32 v17, v17, v18
    v_lshlrev_b32 v16, 4, v16
    v_lshl_add_u32 v16, v17, 8, v16
    s_waitcnt lgkmcnt(0)
    """)
    k = 0
    for c in range(4):
        for q in range(2):
            t = FR3 + (k % 8) * 4; k += 1
            for d in range(4):
                src = acc(2 * q + (d >> 1), c) + 2 * (d & 1)
                a(f"v_pk_mul_f32 {vr(src,2)}, {vr(src,2)}, {vr(src-ACC+A1,2)}")
            for d in range(4):
                src = acc(2 * q + (d >> 1), c) + 2 * (d & 1)
                a(f"v_cvt_pk_bf16_f32 v{t+d}, v{src}, v{src+1}")
            a(f"s_nop 1\nv_permlane16_swap_b32 v{t}, v{t+2}\nv_permlane16_swap_b32 v{t+1}, v{t+3}")
            a(f"buffer_store_dwordx4 {vr(t,4)}, v16, s[{WS}:{WS+3}], s{37 if c < 2 else 40} offen offset:{2048*q + 1024*(c&1)}{wsc}")
    a(f"v_mov_b32 v96, {CNT+16}\nv_mov_b32 v97, 1\ns_mov_b64 exec, 1\nds_add_u32 v96, v97\ns_mov_b64 exec, -1")
    a(f"s_lshl_b32 s40, s{RB}, 4\ns_add_u32 s40, s40, s{CB}\ns_lshl_b32 s40, s40, 6\ns_add_u32 s40, s40, {FL3_OFF}")
    set_flag(a, 40, 96, 1, 4)
    st(10)

    a("L4_cons:")
    tile4()
    UR, WF, ACC4, AD4, D4 = 32, 144, 208, 2, 7
    def acc4(b, c): return ACC4 + (b * 2 + c) * 4
    def fragw(buf, kk, b): return WF + buf * 32 + kk * 16 + b * 4
    def fragu(s_, kk, c): return UR + (s_ % D4) * 16 + kk * 8 + c * 4
    def reads4(s_):
        sl = s_ % 14
        return [f"ds_read_b64_tr_b16 {vr(fragw(s_&1,kk,b)+2*hh,2)}, v{AD4+4*(sl//7)+b} offset:{(sl%7)*8192+(32*kk+4*hh)*128}" for kk in range(2) for b in range(4) for hh in range(2)]
    def mfmas4(s_):
        return [f"{MF} {vr(acc4(b,c),4)}, {vr(fragw(s_&1,kk,b),4)}, {vr(fragu(s_,kk,c),4)}, {vr(acc4(b,c),4)}" for kk in range(2) for b in range(4) for c in range(2)]
    S_KS4, S_KU4, S_UB4, S_REM = 32, 34, 33, 41
    def uaddr():
        return [f"s_lshl_b32 s{S_KU4}, s{S_KS4}, 14", f"s_add_u32 s{S_KU4}, s{S_KU4}, s{S_UB4}", f"s_sub_u32 s{S_REM}, s{S_REM}, 1", f"s_cmp_lt_i32 s{S_REM}, 0",
                f"s_cmov_b32 s{S_KU4}, 0x7fff0000", f"s_add_u32 s{S_KS4}, s{S_KS4}, 1", f"s_cmp_eq_u32 s{S_KS4}, 28", f"s_cselect_b32 s{S_KS4}, 0, s{S_KS4}"]
    def uload(s_, kk): return [f"buffer_load_dwordx4 {vr(fragu(s_,kk,c),4)}, v10, s[{WS}:{WS+3}], s{S_KU4} offen offset:{2048*kk+1024*c}{usc}" for c in range(2)]
    YR, GR, OUT, YX = 32, 20, 44, 48
    srd(a, OUT, P['out'], SIZE['out'])
    a(f"""
    v_bfe_u32 v16, v0, 2, 2
    v_lshl_add_u32 v17, v{VG}, 3, v16
    v_lshlrev_b32 v17, 7, v17
    v_and_b32 v18, 3, v0
    v_lshl_add_u32 v17, v18, 3, v17
    v_lshrrev_b32 v16, 1, v16
    v_and_b32 v18, 1, v{VG}
    v_lshl_add_u32 v16, v18, 1, v16
    v_lshl_add_u32 v{AD4}, v16, 5, v17
    """)
    for b in range(1, 4): a(f"v_xor_b32 v{AD4+b}, {32*b}, v{AD4}")
    for b in range(4): a(f"v_add_u32 v{AD4+4+b}, {7*8192}, v{AD4+b}")
    a(f"""
    s_lshl_b32 s40, s26, 12
    v_lshlrev_b32 v10, 4, v0
    v_add_u32 v10, s40, v10
    s_mul_i32 s{S_UB4}, s{RB4}, {28*16384 if 'same' not in p4mode else 0}
    s_add_u32 s{S_UB4}, s{S_UB4}, {U_OFF if 'fakez' not in p4mode else Z2_OFF}
    s_mov_b32 s{S_REM}, 28
    s_lshl_b32 s40, s26, 5
    v_add_u32 v16, s40, v11
    v_and_b32 v18, 1, v{VG}
    v_lshlrev_b32 v18, 1, v18
    v_lshrrev_b32 v19, 1, v{VG}
    v_add_u32 v18, v18, v19           ; gg
    s_lshl_b32 s37, s{RB4}, 7
    v_add_u32 v24, s37, v16
    v_lshlrev_b32 v24, 11, v24
    v_lshl_add_u32 v24, v18, 4, v24
    s_lshl_b32 s40, s{DB}, 7
    v_add_u32 v24, s40, v24
    v_sub_u32 v19, 3, v18
    s_cmp_ge_u32 s{DB}, 8
    s_cselect_b64 vcc, -1, 0
    s_cselect_b32 s48, 1, 0
    v_cndmask_b32 v18, v18, v19, vcc
    v_mul_u32_u24 v25, 144, v16
    v_lshl_add_u32 v25, v18, 4, v25
    v_add_u32 v25, {YBASE}, v25
    s_lshl_b32 s40, s26, 8
    s_add_u32 s40, s40, {YBASE + 20480}
    v_lshlrev_b32 v26, 2, v11
    v_add_u32 v26, s40, v26
    """)
    a(f"s_mul_i32 s{S_KS4}, s3, 3" if rot else f"s_mov_b32 s{S_KS4}, 0")
    for i in range(32): a(f"v_mov_b32 v{ACC4+i}, 0")
    a(f"s_barrier")
    st(11)
    for s_ in range(D4 - 1): a("\n".join(uaddr() + uload(s_, 0) + uload(s_, 1)))
    a("\n".join(uaddr()))
    a("\n".join(reads4(0)))
    a(f"s_mov_b32 s{S_CNT}, 2\n.p2align 6\nL4_k:")
    for s_ in range(14):
        M = mfmas4(s_)
        f = spread(12, reads4(s_ + 1))
        UL = uload(s_ - 1, 0) + uload(s_ - 1, 1)
        for pos, l in zip(upos, UL): f.setdefault(pos, []).append(l)
        ua = uaddr()
        f.setdefault(max(upos), []).extend(ua[:2])
        f.setdefault(min(max(upos) + 1, 15), []).extend(ua[2:5])
        f.setdefault(min(max(upos) + 2, 15), []).extend(ua[5:])
        if s_ == 13: f.setdefault(15, []).extend([f"s_sub_u32 s{S_CNT}, s{S_CNT}, 1", f"s_cmp_lg_u32 s{S_CNT}, 0"])
        a(f"s_waitcnt vmcnt({4*(D4-2)}) lgkmcnt(0)")
        if s_ in (6, 13): a("s_barrier")
        a("\n".join(interleave(M, f)))
    a("s_cbranch_scc1 L4_k")
    st(12)
    a("s_waitcnt vmcnt(0)")
    def yidx(pr, c): return pr * 2 + c
    L_ = []
    for c in range(2): a(f"ds_read_b32 v{GR+c}, v26 offset:{16*c}")
    def yreads(mirror):
        for pr in range(2):
            for c in range(2):
                o = 4 * c * 144 + 64 * ((1 - pr) if mirror else pr)
                a(f"ds_read_b128 {vr(YR+4*yidx(pr,c),4)}, v25 offset:{o}")
                if mirror: a(f"ds_read_b32 v{YX+yidx(pr,c)}, v25 offset:{o+16}")
        a("s_nop 1")
        for pr in range(2):
            for c in range(2):
                for r in range(4): a(f"v_permlane16_swap_b32 v{acc4(2*pr,c)+r}, v{acc4(2*pr+1,c)+r}")
        a("s_waitcnt lgkmcnt(0)")
        for c in range(2): a(f"v_sub_f32 v{28+c}, 1.0, v{GR+c}")
    def epi(mirror):
        yreads(mirror)
        for pr in range(2):
            for c in range(2):
                t = 64 + yidx(pr, c) * 16
                y = YR + 4 * yidx(pr, c)
                for d in range(4):
                    if not mirror: a(f"v_lshlrev_b32 v{t+2*d}, 16, v{y+d}\nv_and_b32 v{t+2*d+1}, 0xffff0000, v{y+d}")
                    else: a(f"v_lshlrev_b32 v{t+2*d}, 16, v{YX+yidx(pr,c) if d == 0 else y+4-d}\nv_and_b32 v{t+2*d+1}, 0xffff0000, v{y+3-d}")
                for d in range(4):
                    src = acc4(2 * pr + (d >> 1), c) + 2 * (d & 1)
                    for h in range(2):
                        a(f"v_mul_f32 v{src+h}, v{28+c}, v{src+h}")
                        a(f"v_fmac_f32 v{src+h}, v{GR+c}, v{t+2*d+h}")
                for d in range(4):
                    src = acc4(2 * pr + (d >> 1), c) + 2 * (d & 1)
                    a(f"v_cvt_pk_bf16_f32 v{t+8+d}, v{src}, v{src+1}")
                a(f"s_mov_b32 s40, {4*c*2048}")
                a(f"buffer_store_dwordx4 {vr(t+8,4)}, v24, s[{OUT}:{OUT+3}], s40 offen offset:{64*pr}{osc}")
        if dev:
            a("s_waitcnt vmcnt(0)"); st(13, 2)
        a("s_endpgm")
    a("s_cmp_lg_u32 s48, 0\ns_cbranch_scc1 L4_mir")
    epi(False)
    a("L4_mir:")
    epi(True)

    a(".p2align 6\nL1_b4:")
    body4(a, reads1, mfmasB, rs1)
    a("s_setpc_b64 s[62:63]")
    from gen_side import gen_side
    gen_side(a, locals())
    a("L_end:\ns_endpgm")
    return ("fused_kernel", a.text(), 256, 256, 100), ("fused_kernel", 256, 512, CNT + 64)

if __name__ == "__main__":
    import json
    out = sys.argv[1]; kw = json.loads(sys.argv[2]) if len(sys.argv) > 2 else {}
    b, l = gen(**kw)
    open(out, "w").write(kernel_file([l], [b]))
```

```python
from gen_common import *
from gen_k1 import fl, LOG2E

def gen_side(a, E, gp=None):
    if gp is None:
        import gen_p as gp
    P, WS, XTRA, NONCE = gp.P, gp.WS, gp.XTRA, gp.NONCE
    st, hsc, wsc = E['st'], E['hsc'], E['wsc']
    XS = 20
    a("L_side:")
    J, TY, HF = 57, 58, 59
    GW, HM = 48, 44
    a(f"""
    s_lshl_b32 s{J}, s3, 2
    s_add_u32 s{J}, s{J}, s4
    s_sub_u32 s{J}, s{J}, 28
    s_lshr_b32 s{TY}, s5, 1
    s_and_b32 s{HF}, s5, 1
    """)
    srd(a, GW, P['gate_w'], SIZE['gate_w'])
    M0_, MH = 62, 94
    a(f"""
    v_and_b32 v6, 31, v0
    v_lshrrev_b32 v7, 5, v0
    s_mov_b32 s62, 1
    s_mov_b32 s63, 1
    v_lshlrev_b32 v2, 4, v6
    v_add_u32 v3, 1536, v2
    v_add_u32 v4, 512, v2
    v_add_u32 v5, 1024, v2
    v_mov_b32 v8, 0xffff
    v_cndmask_b32 v8, v8, 0, s[62:63]
    s_mov_b32 s6, 0x80000000
    s_mov_b32 s7, 0x80000000
    v_mov_b32 v10, 0
    s_lshl_b32 s40, s{J}, 4
    s_lshl_b32 s41, s5, 1
    s_add_u32 s29, s40, s41            ; e0 / s' base
    """)
    XD, GWR, EX, SX, SM, SE = 32, 96, 112, 208, 240, 248
    a(f"""
    v_add_u32 v16, s29, v7
    v_mov_b32 v20, v16
    v_sub_u32 v21, 2048, v16
    v_sub_u32 v22, 1024, v16
    v_add_u32 v23, 1024, v16
    v_cmp_eq_u32 vcc, 0, v16
    v_mov_b32 v9, 2048
    s_nop 0
    v_cndmask_b32 v23, v23, v9, vcc
    """)
    for sg in range(4): a(f"buffer_load_dwordx4 {vr(GWR+4*sg,4)}, v{2+sg}, s[{GW}:{GW+3}], 0 offen")
    for X in range(4):
        a(f"v_lshlrev_b32 v{24+X}, 11, v{20+X}")
        for sg in range(4):
            a(f"v_add_u32 v{128+sg}, v{24+X}, v{2+sg}\nbuffer_load_dwordx4 {vr(XD+16*X+4*sg,4)}, v{128+sg}, s[{XS}:{XS+3}], 0 offen")
    VM = 20
    a(f"""
    s_cmp_lt_u32 s{TY}, 2
    s_cselect_b32 s{HM}, s{P['hid_re']}, s{P['hid_im']}
    s_cselect_b32 s{HM+1}, s{P['hid_re']+1}, s{P['hid_im']+1}
    s_mov_b32 s{HM+2}, {SIZE['hid_re']}
    s_mov_b32 s{HM+3}, 0x20000
    """)
    for jj in range(8):
        a(f"v_add_u32 v9, {2*jj}, v7\nv_xor_b32 v11, v6, v9\nv_lshlrev_b32 v11, 4, v11\nv_lshl_add_u32 v11, v9, 12, v11\nv_subrev_u32 v{VM+jj}, {1024*(jj&3)}, v11")
    S_MO, S_SL = 30, 31
    a(f"""
    s_lshl_b32 s{S_MO}, s{HF}, 7
    s_and_b32 s40, s{TY}, 1
    s_add_u32 s{S_MO}, s{S_MO}, s40
    s_lshl_b32 s{S_MO}, s{S_MO}, 11
    s_lshl_b32 s{S_SL}, s5, 13
    s_add_u32 s{S_SL}, s{S_SL}, 65536
    """)
    def mdma():
        for h in range(2):
            a(f"s_add_u32 m0, s{S_SL}, {4096*h}\ns_nop 0")
            for j in range(4): a(f"buffer_load_dwordx4 v{VM+4*h+j}, s[{HM}:{HM+3}], s{S_MO} offen offset:{1024*j} lds")
        a(f"s_add_u32 s{S_MO}, s{S_MO}, 65536\ns_xor_b32 s{S_SL}, s{S_SL}, 65536")
    mdma()
    a(f"s_lshl_b32 s40, s5, 10\ns_add_u32 m0, s40, 131072\ns_add_u32 s40, s{S_MO}, {3*65536}\nbuffer_load_dwordx4 v{VM}, s[{HM}:{HM+3}], s40 offen lds")
    def fix(base, d4, ex):
        for i, sg in enumerate((1, 2)):
            a(f"v_mov_b32_dpp v{d4+i}, v{base+4*sg} wave_shr:1 row_mask:0xf bank_mask:0xf bound_ctrl:0")
        a(f"v_lshlrev_b32 v{ex}, 16, v{base+8}\nv_lshlrev_b32 v{ex+1}, 16, v{base+4}")
        a(f"v_and_b32 v{d4}, v8, v{d4}\nv_and_b32 v{d4+1}, v8, v{d4+1}")
        a(f"v_cndmask_b32 v{ex}, 0, v{ex}, s[6:7]\nv_cndmask_b32 v{ex+1}, 0, v{ex+1}, s[6:7]")
    def rev(base):
        for d in range(4, 12): a(f"ds_swizzle_b32 v{base+d}, v{base+d} offset:0x7c1f")
    def gdot(dst, base):
        a(f"v_dot2_f32_bf16 v{dst}, v{base}, v{GWR}, 0")
        for i in range(1, 16): a(f"v_dot2_f32_bf16 v{dst}, v{base+i}, v{GWR+i}, v{dst}")
    def unpack(dst, base, sg, k, d4):
        if sg in (0, 3): a(f"v_lshlrev_b32 v{dst}, 16, v{base+4*sg+k}\nv_and_b32 v{dst+1}, 0xffff0000, v{base+4*sg+k}")
        else:
            lo = d4 + sg - 1 if k == 0 else base + 4 * sg + 4 - k
            a(f"v_lshlrev_b32 v{dst}, 16, v{lo}\nv_and_b32 v{dst+1}, 0xffff0000, v{base+4*sg+3-k}")
    def padd(d, x, y): a(f"v_pk_add_f32 {vr(d,2)}, {vr(x,2)}, {vr(y,2)}")
    def psub(d, x, y): a(f"v_pk_add_f32 {vr(d,2)}, {vr(x,2)}, {vr(y,2)} neg_lo:[0,1] neg_hi:[0,1]")
    def red32(regs, tmp):
        a("s_nop 2")
        for sh in (8, 4, 2, 1):
            for r in regs: a(f"v_add_f32_dpp v{r}, v{r}, v{r} row_ror:{sh} row_mask:0xf bank_mask:0xf")
        for i, r in enumerate(regs): a(f"v_mov_b32 v{tmp+i}, v{r}")
        a("s_nop 1")
        for i, r in enumerate(regs): a(f"v_permlane16_swap_b32 v{r}, v{tmp+i}")
        for i, r in enumerate(regs): a(f"v_add_f32 v{r}, v{r}, v{tmp+i}")
    def sigmoid(regs):
        for r in regs: a(f"v_mul_f32 v{r}, {fl(-LOG2E)}, v{r}")
        for r in regs: a(f"v_exp_f32 v{r}, v{r}")
        a("s_nop 0")
        for r in regs: a(f"v_add_f32 v{r}, 1.0, v{r}")
        for r in regs: a(f"v_rcp_f32 v{r}, v{r}")
        a("s_nop 0")
    UP, OUTP, T1 = 132, 164, 124
    def U(X, sg): return UP + (X * 4 + sg) * 2
    def OUT(ty, sg_): return OUTP + (ty * 2 + sg_) * 4
    a(f"s_waitcnt vmcnt(9)")
    st(14)
    a(f"""
    v_lshrrev_b32 v9, 2, v0
    v_and_b32 v11, 3, v0
    v_lshlrev_b32 v9, 12, v9
    v_lshl_add_u32 v9, v11, 7, v9
    s_and_b32 s40, s{J}, 3
    s_min_u32 s40, s40, 2
    s_lshl_b32 s40, s40, 16
    s_add_u32 s40, s40, s{S_MO}
    buffer_load_dword v204, v9, s[{HM}:{HM+3}], s40 offen
    """)
    def seqpf(dst):
        srd(a, 8, P['seq_re'], SIZE['seq_re'])
        a(f"""
        s_bfe_u32 s40, s{J}, 0x20001
        s_lshl_b32 s40, s40, 7
        s_lshr_b32 s41, s{J}, 3
        s_lshl_b32 s41, s41, 5
        s_add_u32 s40, s40, s41
        s_lshl_b32 s41, s5, 2
        s_add_u32 s40, s40, s41
        s_lshl_b32 s40, s40, 13
        s_and_b32 s41, s{J}, 1
        s_lshl_b32 s41, s41, 12
        s_add_u32 s40, s40, s41
        v_lshlrev_b32 v9, 4, v0
        """)
        PFN = 8 if E['pf'] else 0
        for m in range(2 if PFN else 0):
            for r in range(4): a(f"s_add_u32 s41, s40, {r*8192}\nbuffer_load_dwordx4 v[{dst}:{dst+3}], v9, s[8:11], s41 offen")
            a(f"s_mov_b32 s8, s{P['seq_im']}\ns_mov_b32 s9, s{P['seq_im']+1}")
    sq = E.get('seqat', 0)
    if sq == 0: seqpf(196)
    D4 = [120, 122, 206, 248]
    GD = 252
    for X in range(4):
        gdot(GD + X, XD + 16 * X); rev(XD + 16 * X)
    a("s_waitcnt lgkmcnt(0)")
    for X in range(4): fix(XD + 16 * X, D4[X], EX + 2 * X)
    AL = 200
    for i in range(4): a(f"v_mov_b32 v{AL+i}, 0")
    for k in range(4):
        for X in range(4):
            for sg in range(4): unpack(U(X, sg), XD + 16 * X, sg, k, D4[X])
        for sg in range(4):
            A_, B_, C_, D_, t1 = U(0, sg), U(1, sg), U(2, sg), U(3, sg), T1 + 2 * sg
            padd(t1, A_, B_); psub(B_, A_, B_); padd(A_, C_, D_); psub(D_, C_, D_)
            psub(C_, t1, A_); padd(A_, t1, A_); psub(t1, B_, D_); padd(D_, B_, D_)
        for sgm, src in enumerate((lambda sg: U(0, sg), lambda sg: U(2, sg))):
            padd(U(1, 0), src(0), src(1)); padd(U(1, 1), src(2), src(3))
            padd(U(1, 2), U(1, 0), U(1, 1)); psub(U(1, 3), U(1, 0), U(1, 1))
            padd(AL + 2 * sgm, AL + 2 * sgm, U(1, 2))
            a(f"v_cvt_pk_bf16_f32 v{OUT(0,sgm)+k}, v{U(1,2)}, v{U(1,2)+1}\nv_cvt_pk_bf16_f32 v{OUT(1,sgm)+k}, v{U(1,3)}, v{U(1,3)+1}")
        for sgm, src in enumerate((lambda sg: T1 + 2 * sg, lambda sg: U(3, sg))):
            psub(U(1, 0), src(0), src(1)); psub(U(1, 1), src(2), src(3))
            psub(U(1, 2), U(1, 0), U(1, 1)); padd(U(1, 3), U(1, 0), U(1, 1))
            a(f"v_cvt_pk_bf16_f32 v{OUT(2,sgm)+k}, v{U(1,2)}, v{U(1,2)+1}\nv_cvt_pk_bf16_f32 v{OUT(3,sgm)+k}, v{U(1,3)}, v{U(1,3)+1}")
    a(f"""
    s_lshl_b32 s40, s5, 1
    v_add_u32 v17, s40, v7
    v_xor_b32 v9, v6, v17
    v_lshlrev_b32 v9, 4, v9
    v_lshl_add_u32 v9, v17, 9, v9
    """)
    for i in range(8): a(f"ds_write_b128 v9, {vr(OUTP+4*i,4)} offset:{8192*i}")
    for X in range(4):
        a(f"v_add_f32 v{UP+X}, v{EX+2*X}, v{EX+2*X+1}\nv_sub_f32 v{UP+4+X}, v{EX+2*X}, v{EX+2*X+1}")
    Ee = UP + 8
    a(f"""
    v_add_f32 v{UP}, v{UP}, v{UP+1}
    v_add_f32 v{UP+2}, v{UP+2}, v{UP+3}
    v_sub_f32 v{UP+4}, v{UP+4}, v{UP+5}
    v_sub_f32 v{UP+6}, v{UP+6}, v{UP+7}
    v_add_f32 v{Ee}, v{UP}, v{UP+2}
    v_sub_f32 v{Ee+1}, v{UP}, v{UP+2}
    v_sub_f32 v{Ee+2}, v{UP+4}, v{UP+6}
    v_add_f32 v{Ee+3}, v{UP+4}, v{UP+6}
    v_lshlrev_b32 v9, 2, v17
    v_add_u32 v9, {XTRA+256}, v9
    v_add_f32 v{AL}, v{AL}, v{Ee}
    v_add_f32 v{AL+2}, v{AL+2}, v{Ee+1}
    s_mov_b64 exec, s[6:7]
    """)
    for i in range(4): a(f"ds_write_b32 v9, v{Ee+i} offset:{64*i}")
    a("s_mov_b64 exec, -1")
    a("s_waitcnt lgkmcnt(0)\ns_barrier")
    st(1)
    AF, AF2, BF, ACD, ACM, INI, INI2, PRD, PRM, RA = 32, 96, 160, 192, 200, 208, 216, 224, 240, 12
    a(f"""
    v_and_b32 v18, 15, v0
    v_lshrrev_b32 v19, 4, v0
    v_xor_b32 v9, v18, v19
    v_lshlrev_b32 v9, 4, v9
    v_lshl_add_u32 v9, v18, 9, v9
    s_lshl_b32 s40, s{TY}, 14
    v_add_u32 v9, s40, v9
    """)
    for k in range(4): a(f"v_xor_b32 v{RA+k}, {64*k}, v9")
    for sg_ in range(2):
        for ks in range(8): a(f"ds_read_b128 {vr(AF+(sg_*8+ks)*4,4)}, v{RA+(ks&3)} offset:{8192*sg_+256*(ks>>2)}")
    a(f"""
    s_and_b32 s40, s{TY}, 2
    s_lshl_b32 s40, s40, 6
    s_add_u32 s40, s40, {XTRA+256}
    v_lshlrev_b32 v11, 4, v19
    v_add_u32 v11, s40, v11
    ds_read_b128 {vr(INI,4)}, v11
    ds_read_b128 {vr(INI+4,4)}, v11 offset:64
    s_waitcnt lgkmcnt(0)
    s_barrier
    """)
    mdma()
    a(f"v_sub_f32 v{AL}, v{AL}, v{AL+1}\nv_sub_f32 v{AL+1}, v{AL+2}, v{AL+3}")
    red32([GD, GD + 1, GD + 2, GD + 3, AL, AL + 1], 160)
    a(f"v_cvt_pk_bf16_f32 v{AL}, v{AL}, v{AL}\nv_cvt_pk_bf16_f32 v{AL+1}, v{AL+1}, v{AL+1}")
    sigmoid([GD, GD + 1, GD + 2, GD + 3])
    GA = XTRA + 512
    a(f"v_lshlrev_b32 v9, 2, v17\nv_add_u32 v9, {GA}, v9\nv_lshlrev_b32 v11, 1, v17\nv_add_u32 v11, {GA+256}, v11\ns_mov_b64 exec, s[62:63]")
    for X in range(4): a(f"ds_write_b32 v9, v{GD+X} offset:{64*X}")
    for s_ in range(2): a(f"ds_write_b16 v11, v{AL+s_} offset:{32*s_}")
    a(f"""
    s_mov_b64 exec, -1
    s_mov_b32 s40, 0
    s_cmp_eq_u32 s{TY}, 0
    s_cmov_b32 s40, 1.0
    s_mov_b32 s41, s40
    s_cmp_eq_u32 s{TY}, 3
    s_cmov_b32 s40, -1.0
    s_cmov_b32 s41, 1.0
    v_and_b32 v11, 1, v0
    v_lshlrev_b32 v11, 31, v11
    v_or_b32 v11, 0x3f800000, v11
    v_mul_f32 v9, s41, v11
    v_mul_f32 v11, s40, v11
    s_lshl_b32 s40, s{TY}, 14
    s_lshl_b32 s41, s5, 13
    s_add_u32 s41, s41, 65536
    s_sub_u32 s40, s41, s40
    s_cmp_lt_u32 s{TY}, 2
    s_mov_b32 s42, 0x8000
    s_cmov_b32 s42, 0x80000000
    """)
    for k in range(4): a(f"v_add_u32 v{RA+k}, s40, v{RA+k}")
    for i in range(8): a(f"v_mul_f32 v{INI2+i}, v9, v{INI+i}\nv_mul_f32 v{INI+i}, v11, v{INI+i}")
    for i in range(64): a(f"v_xor_b32 v{AF2+i}, s42, v{AF+i}")
    a(f"""
    s_and_b32 s40, s{TY}, 1
    s_lshl_b32 s40, s40, 1
    v_xor_b32 v16, s40, v18
    v_lshlrev_b32 v16, 5, v16
    v_lshrrev_b32 v9, 1, v19
    v_lshl_add_u32 v16, v9, 4, v16
    v_and_b32 v9, 1, v19
    v_lshl_add_u32 v16, v9, 19, v16
    v_xor_b32 v17, {15*32}, v16
    s_lshr_b32 s32, s{TY}, 1
    s_lshl_b32 s32, s32, 20
    s_lshl_b32 s40, s{J}, 12
    s_add_u32 s32, s32, s40
    s_and_b32 s40, s{TY}, 1
    s_lshl_b32 s40, s40, 11
    s_add_u32 s32, s32, s40
    s_add_u32 s32, s32, {AT_OFF}
    s_lshl_b32 s40, s{HF}, 17
    s_sub_u32 s33, s32, s40
    s_add_u32 s33, s33, {3*131072}
    s_add_u32 s32, s32, s40
    s_waitcnt vmcnt(8)
    """)
    for n in range(5):
        if n == 4:
            a(f"s_mul_i32 s40, s5, {1024 - 8192}\ns_add_u32 s40, s40, {131072 - 65536}")
            for k in range(4): a(f"v_add_u32 v{RA+k}, s40, v{RA+k}")
        for ks in range(8): a(f"ds_read_b128 {vr(BF+4*ks,4)}, v{RA+(ks&3)} offset:{256*(ks>>2)}")
        a("s_waitcnt lgkmcnt(0)")
        if n < 2: mdma()
        for ks in range(8):
            for sg_ in range(2):
                if n < 4: a(f"{MF} {vr(ACD+4*sg_,4)}, {vr(AF+(sg_*8+ks)*4,4)}, {vr(BF+4*ks,4)}, {vr((INI if ks == 0 else ACD)+4*sg_,4)}")
                a(f"{MF} {vr(ACM+4*sg_,4)}, {vr(AF2+(sg_*8+ks)*4,4)}, {vr(BF+4*ks,4)}, {vr((INI2 if ks == 0 else ACM)+4*sg_,4)}")
        if n < 4:
            for k in range(4): a(f"v_xor_b32 v{RA+k}, 0x10000, v{RA+k}")
        if n < 3: a(f"s_waitcnt vmcnt({8 if n < 2 else 0})")
        a("s_nop 7")
        pm = PRM + 4 * n if n < 4 else 28
        for d in range(4):
            if n < 4: a(f"v_cvt_pk_bf16_f32 v{PRD+4*n+d}, v{ACD+2*d}, v{ACD+2*d+1}")
            a(f"v_cvt_pk_bf16_f32 v{pm+d}, v{ACM+2*d}, v{ACM+2*d+1}")
    a(f"s_and_b32 s40, s{TY}, 1\ns_cmp_lg_u32 s40, 0\ns_cbranch_scc1 L_noshift\ns_mov_b32 s40, 0x00010001\ns_mov_b32 s41, 0x00010001")
    for n in range(4):
        nx = PRM + 4 * (n + 1) if n < 3 else 28
        for d in range(4): a(f"v_cndmask_b32 v{PRM+4*n+d}, v{PRM+4*n+d}, v{nx+d}, s[40:41]")
    a("s_nop 1")
    for i in range(16): a(f"v_mov_b32_dpp v{PRM+i}, v{PRM+i} row_ror:15 row_mask:0xf bank_mask:0xf")
    a("L_noshift:")
    st(3, 96)
    XD_ = None
    SX, SM, SE, GWR = 96, 128, 136, 140
    for sg in range(4): a(f"buffer_load_dwordx4 {vr(GWR+4*sg,4)}, v{2+sg}, s[{GW}:{GW+3}], 0 offen")
    for ri, row in enumerate((512, 1536)):
        a(f"s_mov_b32 s40, {row*2048}")
        for sg in range(4): a(f"buffer_load_dwordx4 {vr(SX+16*ri+4*sg,4)}, v{2+sg}, s[{XS}:{XS+3}], s40 offen")
    a(f"""
    s_lshl_b32 s40, s29, 11
    v_add_u32 v11, s40, v2
    s_mov_b32 s{MH}, 0
    s_mov_b32 s{MH+1}, -1
    v_mov_b32 v20, s{P['hid_re']}
    v_mov_b32 v21, s{P['hid_re']+1}
    v_mov_b32 v22, s{P['hid_im']}
    v_mov_b32 v23, s{P['hid_im']+1}
    v_cndmask_b32 v20, v20, v22, s[{MH}:{MH+1}]
    v_cndmask_b32 v21, v21, v23, s[{MH}:{MH+1}]
    v_add_co_u32 v20, vcc, v20, v11
    s_nop 1
    v_addc_co_u32 v21, vcc, 0, v21, vcc
    global_load_dwordx4 {vr(SM,4)}, v[20:21], off
    global_load_dwordx4 {vr(SM+4,4)}, v[20:21], off offset:2048
    """)
    for n in range(4):
        for Pp, vo, so, off in ((PRD + 4 * n, 16, 32, 512 * n), (PRM + 4 * n, 17, 33, 512 * (3 - n))):
            a(f"v_permlane16_swap_b32 v{Pp}, v{Pp+2}\nv_permlane16_swap_b32 v{Pp+1}, v{Pp+3}")
            a(f"buffer_store_dwordx4 {vr(Pp,4)}, v{vo}, s[{WS}:{WS+3}], s{so} offen offset:{off}{wsc}")
    if sq == 1: seqpf(164)
    st(2, 160)
    if E.get('spad'): a(f".rept {E['spad']}\nv_add_u32 v30, 0x12345, v30\n.endr")
    UP = 32; OUTP = 64
    a(f"s_waitcnt vmcnt({16 if sq == 1 else 8})")
    gdot(28, SX); rev(SX); gdot(29, SX + 16); rev(SX + 16)
    a("s_waitcnt lgkmcnt(0)")
    fix(SX, 12, SE); fix(SX + 16, 14, SE + 2)
    a("v_mov_b32 v18, 0\nv_mov_b32 v19, 0")
    for k in range(4):
        for X in range(2):
            for sg in range(4): unpack(U(X, sg), SX + 16 * X, sg, k, 12 + 2 * X)
        for sg in range(4):
            padd(U(2, sg), U(0, sg), U(1, sg)); psub(U(3, sg), U(0, sg), U(1, sg))
        padd(U(0, 0), U(2, 0), U(2, 1)); padd(U(0, 1), U(2, 2), U(2, 3)); psub(U(0, 2), U(3, 0), U(3, 1)); psub(U(0, 3), U(3, 2), U(3, 3))
        padd(U(1, 0), U(0, 0), U(0, 1)); psub(U(1, 1), U(0, 0), U(0, 1)); psub(U(1, 2), U(0, 2), U(0, 3)); padd(U(1, 3), U(0, 2), U(0, 3))
        padd(18, 18, U(1, 0))
        for ty in range(4): a(f"v_cvt_pk_bf16_f32 v{OUT(ty,0)+k}, v{U(1,ty)}, v{U(1,ty)+1}")
    for d in range(4):
        a(f"v_cndmask_b32 v{OUT(0,0)+d}, v{OUT(0,0)+d}, v{OUT(2,0)+d}, s[{MH}:{MH+1}]\nv_cndmask_b32 v{OUT(1,0)+d}, v{OUT(1,0)+d}, v{OUT(3,0)+d}, s[{MH}:{MH+1}]")
    a("v_sub_f32 v18, v18, v19")
    for i in range(2):
        a(f"v_dot2_f32_bf16 v{UP+i}, v{SM+4*i}, v{OUT(i,0)}, 0")
        for d in range(1, 4): a(f"v_dot2_f32_bf16 v{UP+i}, v{SM+4*i+d}, v{OUT(i,0)+d}, v{UP+i}")
    a(f"""
    v_add_f32 v{UP+2}, v{SE}, v{SE+1}
    v_add_f32 v{UP+3}, v{SE+2}, v{SE+3}
    v_add_f32 v{UP+2}, v{UP+2}, v{UP+3}
    v_sub_f32 v{UP+3}, v{SE}, v{SE+1}
    v_sub_f32 v{UP+4}, v{SE+2}, v{SE+3}
    v_sub_f32 v{UP+3}, v{UP+3}, v{UP+4}
    v_add_f32 v18, v18, v{UP+2}
    s_and_b32 s40, s5, 1
    s_cmp_eq_u32 s40, 0
    s_cselect_b32 s40, 1.0, -1.0
    v_mul_f32 v{UP+2}, s40, v{UP+2}
    v_mul_f32 v{UP+3}, s40, v{UP+3}
    v_cndmask_b32 v{UP+2}, v{UP+2}, 0, s[{MH}:{MH+1}]
    v_cndmask_b32 v{UP+3}, 0, v{UP+3}, s[{MH}:{MH+1}]
    v_add_f32 v{UP}, v{UP}, v{UP+2}
    v_sub_f32 v{UP+1}, v{UP+1}, v{UP+3}
    """)
    red32([28, 29, 18, UP, UP + 1], UP + 8)
    sigmoid([28, 29])
    a(f"""
    v_lshlrev_b32 v9, 6, v7
    s_lshl_b32 s40, s5, 3
    s_add_u32 s40, s40, {GA+320}
    v_add_u32 v9, s40, v9
    v_mov_b32 v11, {GA+448}
    s_mov_b64 exec, s[62:63]
    ds_write_b64 v9, {vr(UP,2)}
    ds_write_b32 v11, v18
    ds_write_b64 v11, v[28:29] offset:8
    s_mov_b64 exec, -1
    """)
    gp.get_nonce(a, 2)
    a("s_waitcnt lgkmcnt(0)\ns_barrier")
    a(f"""
    s_cmp_lg_u32 s5, 0
    s_cbranch_scc1 L_nosmall
    v_lshlrev_b32 v2, 4, v0
    v_add_u32 v3, {GA}, v2
    ds_read_b128 v[4:7], v3
    v_lshrrev_b32 v8, 2, v0
    v_and_b32 v9, 3, v0
    v_lshlrev_b32 v9, 4, v9
    s_lshl_b32 s40, s{J}, 6
    v_lshlrev_b32 v11, 11, v8
    v_add_u32 v11, {G_OFF}, v11
    v_add_u32 v11, s40, v11
    """)
    for blk, base in ((4, CV_OFF), (5, VA_OFF), (6, VB_OFF)):
        a(f"s_add_u32 s41, s40, {base}\nv_mov_b32 v12, s41\nv_cmp_eq_u32 vcc, {blk}, v8\ns_nop 1\nv_cndmask_b32 v11, v11, v12, vcc")
    a(f"""
    v_mov_b32 v12, {SP_OFF}
    v_cmp_eq_u32 vcc, 7, v8
    s_nop 1
    v_cndmask_b32 v11, v11, v12, vcc
    v_add_u32 v11, v11, v9
    s_cmp_eq_u32 s{J}, 0
    s_cselect_b32 s40, -1, 0x0fffffff
    s_mov_b32 exec_lo, s40
    s_mov_b32 exec_hi, 0
    s_waitcnt lgkmcnt(0)
    buffer_store_dwordx4 v[4:7], v11, s[{WS}:{WS+3}], 0 offen{wsc}
    s_mov_b64 exec, -1
    L_nosmall:
    """)
    a(f"s_lshl_b32 s40, s{J}, 6\ns_add_u32 s40, s40, {FLA_OFF}")
    gp.set_flag(a, 40, 20, 0, 8)
    if sq == 2: seqpf(120)
    if E.get('pfm') == 'split' and E['pf']:
        srd(a, 44, P['w_sp'], SIZE['w_sp'])
        a(f"s_lshl_b32 s29, s{J}, 3\ns_add_u32 s29, s29, s5\ns_lshl_b32 s29, s29, 4\nv_lshlrev_b32 v2, 4, v0")
        for i in range(16):
            E['pfo'](29, 2, 37, 40)
            a(f"buffer_load_dwordx4 v[120:123], v2, s[44:47], s37 offen")
    st(7)

    TAU, TT, ET = 48, 49, 50
    TS = 8
    S_LDS, S_LO, S_KT, S_FB, S_CNT = 30, 31, 12, 13, 35
    a(f"s_and_b32 s{TAU}, s{J}, 1\ns_bfe_u32 s{TT}, s{J}, 0x20001\ns_lshr_b32 s{ET}, s{J}, 3")
    a("s_cmp_lt_u32 s5, 4\ns_cbranch_scc1 L3_scons")
    srd(a, TS, P['seq_re'], SIZE['seq_re'])
    a(f"s_lshl_b32 s40, s{TT}, 20\ns_lshl_b32 s41, s{TAU}, 12\ns_add_u32 s40, s40, s41")
    E['l3_common'](13, 40, False)
    a(f"s_lshl_b32 s{S_FB}, s{TAU}, 2\ns_add_u32 s{S_FB}, s{S_FB}, s{ET}\ns_lshl_b32 s{S_FB}, s{S_FB}, 17\ns_add_u32 s{S_FB}, s{S_FB}, {AT_OFF}")
    a(f"s_mov_b32 s{S_KT}, 0")
    vm = gp.VM(a)
    full3, preT, Fonly = E['k3ops'](vm, 1023, side=True)
    preT()
    a(f"s_mov_b32 s40, {FLA_OFF}")
    gp.poll_flags(a, 40, 24, 32)
    vm.clear()
    Fonly(0); Fonly(1); vm.wait(0); a("s_barrier"); Fonly(2); Fonly(3)
    def sw(): a(f"s_mov_b32 s{TS}, s{P['seq_im']}\ns_mov_b32 s{TS+1}, s{P['seq_im']+1}\ns_add_u32 s{S_FB}, s{S_FB}, {1<<20}")
    gp.run_loader(a, vm, 4, 16, 4, full3, S_CNT, switch={8: sw}, unroll=4)
    def yflag():
        a(f"s_lshl_b32 s40, s{J}, 6\ns_add_u32 s40, s40, {FLY_OFF}")
        gp.set_flag(a, 40, 96, 1, 4)
    srd(a, TS, P['w_out'], SIZE['w_out'] if E['wpf'] == 'side' else 0)
    a(f"s_lshl_b32 s40, s{J}, 2\ns_add_u32 s40, s40, s26\ns_mul_i32 s40, s40, {28*1024}\nv_lshlrev_b32 v2, 4, v0")
    for i in range(7 if E['wpf'] == 'side' else 0):
        for j in range(4): a(f"buffer_load_dwordx4 v[28:31], v2, s[{TS}:{TS+3}], s40 offen offset:{1024*j}")
        a("s_add_u32 s40, s40, 4096")
    E['l4_setup']()
    if E.get('wtail') or E.get('wloop'): E['wdma'](vm, 0, 14)
    else: E['wreg'](vm, 0, 14)
    if E.get('yat') == 0: E['fly1']()
    a("s_branch L4_load")

    a("L3_scons:")
    KA0, KA1, VG = E['KA0'], E['KA1'], E['VG']
    acc, reads3, mfmas3, AD, ACC = E['acc'], E['reads3'], E['mfmas3'], E['AD'], E['ACC']
    S_SLOT, S_DEL = 38, 39
    kc_frag_addr(a, KA0, KA1, 14, 15, 16)
    a(f"v_lshrrev_b32 v{VG}, 4, v0\nv_bfe_u32 v11, v0, 2, 2\nv_lshlrev_b32 v11, 3, v11\nv_and_b32 v16, 3, v0\nv_add_u32 v11, v11, v16")
    E['cons3_addr'](27, 28)
    a(f"""
    v_and_b32 v16, 1, v0                ; par
    v_bfe_u32 v17, v0, 2, 2
    v_lshlrev_b32 v17, 2, v17
    v_bfe_u32 v18, v0, 1, 1
    v_add_u32 v17, v17, v18
    v_lshl_add_u32 v17, v16, 1, v17
    v_lshlrev_b32 v17, 5, v17
    v_lshl_add_u32 v17, v16, 11, v17
    v_lshrrev_b32 v18, 1, v{VG}
    v_lshl_add_u32 v17, v18, 12, v17
    v_and_b32 v18, 1, v{VG}
    v_lshl_add_u32 v17, v18, 4, v17
    s_lshl_b32 s37, s27, 10
    v_add_u32 v{AD}, s37, v17
    v_xor_b32 v{AD+1}, 64, v{AD}
    """)
    frag = E['frag']
    E['cons3_hi']()
    def reads3(sl, kk, buf):
        hi, so = 4 * (sl >> 1), (sl & 1) * 32768
        order = [(0, 0)] + [(1, i) for i in range(4)] + [(0, i) for i in range(1, 4)]
        return [(f"ds_read_b128 {vr(frag(buf,op,i),4)}, v{AD+hi+2+kk} offset:{so+i*2048}" if op else
                 f"ds_read_b128 {vr(frag(buf,op,i),4)}, v{AD+hi+(i&1)} offset:{so+512*(i>>1)+8192*kk}") for op, i in order]
    IV, PS = 96, 192
    for i in range(64): a(f"v_mov_b32 v{ACC+i}, 0")
    a(f"""
    s_lshl_b32 s37, s{ET}, 9
    s_lshl_b32 s40, s27, 8
    s_add_u32 s37, s37, s40
    s_lshl_b32 s40, s{TAU}, 12
    s_add_u32 s37, s37, s40
    s_add_u32 s37, s37, {VA_OFF}
    v_lshlrev_b32 v16, 5, v{VG}
    s_mov_b32 s{S_SLOT}, 0
    s_setprio 1
    s_barrier
    """)
    st(8)
    for q in range(2):
        for h in range(2): a(f"buffer_load_dwordx4 {vr(IV+8*q+4*h,4)}, v16, s[{WS}:{WS+3}], s37 offen offset:{128*q+16*h}{hsc}")
    XR, XC, XX, CON, CF, CA = 112, 20, 24+4, 6+0, 0, 0
    XR, XC, XX, CON, CF, CA = 192, 208, 224, 228, 232, 10
    a(f"""
    v_lshrrev_b32 v17, 1, v0
    v_lshlrev_b32 v17, 6, v17
    v_and_b32 v18, 1, v0
    v_lshl_add_u32 v17, v18, 4, v17
    s_lshl_b32 s40, s{TAU}, 5
    s_add_u32 s40, s40, {CV_OFF}
    buffer_load_dwordx4 v[24:27], v17, s[{WS}:{WS+3}], s40 offen{hsc}
    v_mov_b32 v18, 0
    s_mov_b32 s40, {SP_OFF}
    buffer_load_dword v22, v18, s[{WS}:{WS+3}], s40 offen{hsc}
    s_lshl_b32 s40, s26, 10
    s_add_u32 s40, s40, {XTRA+1024}
    v_lshlrev_b32 v17, 4, v0
    v_add_u32 v17, s40, v17
    v_lshlrev_b32 v{CA}, 4, v{VG}
    v_add_u32 v{CA}, s40, v{CA}
    """)
    for i in range(36): a(f"v_mov_b32 v{XR+i}, 0")
    for i in range(4): a(f"v_mov_b32 v{CON+i}, 0xbf803f80")
    a("s_waitcnt vmcnt(1)\nds_write_b128 v17, v[24:27]")
    frag = E['frag']
    def readsP(sl, kk, buf): return reads3(sl, kk, buf) + [f"ds_read_b128 {vr(CF+4*buf,4)}, v{CA} offset:{128*sl+64*kk}"]
    def mfmasP(buf):
        L = mfmas3(buf)
        L += [f"{MF} {vr(XR+4*b,4)}, {vr(frag(buf,0,b),4)}, {vr(CON,4)}, {vr(XR+4*b,4)}" for b in range(4)]
        L += [f"{MF} {vr(XC+4*c,4)}, {vr(CF+4*buf,4)}, {vr(frag(buf,1,c),4)}, {vr(XC+4*c,4)}" for c in range(4)]
        L += [f"{MF} {vr(XX,4)}, {vr(CF+4*buf,4)}, {vr(CON,4)}, {vr(XX,4)}"]
        return L
    a("\n".join(readsP(0, 0, 0)))
    loop4(a, 2, readsP, mfmasP, S_CNT, extra=lambda sl, ss: ({20: [f"v_add_u32 v{CA}, 512, v{CA}"]} if (sl, ss) == (3, 0) else {}))
    a("s_nop 7")
    a(f"""
    v_and_b32 v17, 1, v0
    v_lshlrev_b32 v17, 31, v17
    v_or_b32 v17, 0x3f800000, v17
    s_waitcnt vmcnt(0)
    s_cmp_eq_u32 s{TAU}, 0
    s_cselect_b32 s40, 1.0, 0
    v_mul_f32 v18, s40, v17
    v_mul_f32 v18, v18, v22
    s_or_b32 s40, s{ET}, s27
    s_cmp_lg_u32 s40, 0
    s_cbranch_scc1 L3_nocol
    s_lshl_b32 s37, s{TT}, 8
    s_lshl_b32 s40, s28, 7
    s_add_u32 s37, s37, s40
    s_add_u32 s37, s37, s{TAU}
    s_mul_i32 s37, s37, {YPITCH*2}
    s_add_u32 s37, s37, {YM_OFF + 1024}
    v_and_b32 v14, 15, v0
    v_mul_u32_u24 v14, {YPITCH*4}, v14
    v_lshl_add_u32 v14, v{VG}, 4, v14
    v_add_u32 v16, {YP_OFF - YM_OFF}, v14
    """)
    for c in range(4):
        a(f"v_add_f32 v{XC+4*c}, v{XC+4*c}, v18\nv_cvt_pk_bf16_f32 v{XC+4*c}, v{XC+4*c}, v{XC+4*c}")
        a(f"buffer_store_dwordx4 {vr(XC+4*c,4)}, v14, s[{WS}:{WS+3}], s37 offen{wsc}\nbuffer_store_dwordx4 {vr(XC+4*c,4)}, v16, s[{WS}:{WS+3}], s37 offen{wsc}")
        a(f"s_add_u32 s37, s37, {32*YPITCH*2}")
    a(f"""
    L3_nocol:
    s_or_b32 s40, s{TAU}, s{TT}
    s_or_b32 s40, s40, s28
    s_cmp_lg_u32 s40, 0
    s_cbranch_scc1 L3_norow
    s_lshl_b32 s37, s{ET}, 8
    s_lshl_b32 s40, s27, 7
    s_add_u32 s37, s37, s40
    s_add_u32 s37, s37, {YM_OFF + 1024*YPITCH*2}
    v_lshlrev_b32 v14, 4, v{VG}
    v_add_u32 v16, {YP_OFF - YM_OFF}, v14
    """)
    for i in range(16): a(f"v_add_f32 v{XR+i}, v{XR+i}, v{IV+i}")
    for i in range(8): a(f"v_cvt_pk_bf16_f32 v{XR+i}, v{XR+2*i}, v{XR+2*i+1}")
    a(f"v_add_f32 v{XX}, v{XX}, v22\nv_cvt_pk_bf16_f32 v{XX}, v{XX}, v{XX}")
    a(f"s_mov_b32 s40, 0x00010001\ns_mov_b32 exec_lo, s40\ns_mov_b32 exec_hi, s40")
    for q in range(2):
        a(f"buffer_store_dwordx4 {vr(XR+4*q,4)}, v14, s[{WS}:{WS+3}], s37 offen offset:{64*q}{wsc}\nbuffer_store_dwordx4 {vr(XR+4*q,4)}, v16, s[{WS}:{WS+3}], s37 offen offset:{64*q}{wsc}")
    a(f"s_mov_b32 s37, {YM_OFF + 1024*YPITCH*2 + 1024}")
    a(f"buffer_store_dwordx4 {vr(XX,4)}, v14, s[{WS}:{WS+3}], s37 offen{wsc}\nbuffer_store_dwordx4 {vr(XX,4)}, v16, s[{WS}:{WS+3}], s37 offen{wsc}")
    a("s_mov_b64 exec, -1\nL3_norow:\ns_nop 1")
    for i in range(64): a(f"v_mov_b32 v{PS+i}, v{ACC+i}\nv_mov_b32 v{ACC+i}, 0")
    a("s_nop 1")
    loop4(a, 2, reads3, mfmas3, S_CNT)
    st(9)
    a(f"""
    v_and_b32 v17, 1, v0
    v_lshlrev_b32 v17, 31, v17
    v_or_b32 v17, 0x3f800000, v17
    v_mov_b32 v18, v17
    s_cmp_eq_u32 s{TAU}, 0
    s_cselect_b32 s40, 1.0, -1.0
    v_mul_f32 v20, s40, v17
    v_mul_f32 v21, s40, v17
    v_mov_b32 v19, v17
    s_lshl_b32 s37, s{TT}, 8
    s_lshl_b32 s40, s28, 7
    s_add_u32 s37, s37, s40
    s_add_u32 s37, s37, s{TAU}
    s_mul_i32 s37, s37, {YPITCH*2}
    s_lshl_b32 s40, s{ET}, 8
    s_add_u32 s37, s37, s40
    s_lshl_b32 s40, s27, 7
    s_add_u32 s37, s37, s40
    s_add_u32 s37, s37, {YM_OFF}
    v_and_b32 v14, 15, v0
    v_mul_u32_u24 v14, {YPITCH*4}, v14
    v_lshl_add_u32 v14, v{VG}, 4, v14
    v_add_u32 v16, {YP_OFF - YM_OFF}, v14
    s_waitcnt vmcnt(0) lgkmcnt(0)
    s_nop 4
    """)
    T = 32
    for c in range(4):
        for q in range(2):
            t = T + ((c * 2 + q) % 2) * 24
            for d in range(4):
                o = (2 * q + (d >> 1)) * 16 + c * 4 + 2 * (d & 1)
                a(f"v_pk_add_f32 {vr(t+2*d,2)}, {vr(PS+o,2)}, {vr(ACC+o,2)} neg_lo:[0,1] neg_hi:[0,1]")
                a(f"v_pk_add_f32 {vr(t+8+2*d,2)}, {vr(PS+o,2)}, {vr(ACC+o,2)}")
            for d in range(4):
                a(f"v_pk_fma_f32 {vr(t+2*d,2)}, {vr(IV+8*q+2*d,2)}, v[18:19], {vr(t+2*d,2)}")
                a(f"v_pk_fma_f32 {vr(t+8+2*d,2)}, {vr(IV+8*q+2*d,2)}, v[20:21], {vr(t+8+2*d,2)}")
            for d in range(4):
                a(f"v_cvt_pk_bf16_f32 v{t+16+d}, v{t+2*d}, v{t+2*d+1}")
                a(f"v_cvt_pk_bf16_f32 v{t+20+d}, v{t+8+2*d}, v{t+8+2*d+1}")
            a(f"buffer_store_dwordx4 {vr(t+16,4)}, v14, s[{WS}:{WS+3}], s37 offen offset:{64*q}{wsc}")
            a(f"buffer_store_dwordx4 {vr(t+20,4)}, v16, s[{WS}:{WS+3}], s37 offen offset:{64*q}{wsc}")
        a(f"s_add_u32 s37, s37, {32*YPITCH*2}")
    yflag()
    st(10)
    a("s_branch L4_cons")
```

```python
Z1_OFF   = 0x0000000
Z2_OFF   = 0x0800000
U_OFF    = 0x1000000
ST_OFF   = 0x1800000
AT_OFF   = 0x1900000
VA_OFF   = 0x1B00000
VB_OFF   = 0x1B01000
CV_OFF   = 0x1B02000
G_OFF    = 0x1B03000
SP_OFF   = 0x1B05000
YM_OFF   = 0x1C00000
YP_OFF   = 0x1D30000
YPITCH   = 576
TS_OFF   = 0x2000000
def pmap(f):
    b = 2 * (f >> 5) + ((f >> 2) & 1)
    i = 4 * ((f >> 3) & 3) + (f & 3)
    return 16 * b + i
FL1_OFF  = 0x1E80000
FL3_OFF  = 0x1E84000
FLA_OFF  = 0x1E88000
FLY_OFF  = 0x1E89000
```

```python
import sys, struct
from gen_common import *
from gen_k1 import gelu_pairs, fl, LOG2E, K0, K1C

P = dict(x=64, seq_re=66, seq_im=68, hid_re=70, hid_im=72, bx=74, w_in=76, w_sp=78, b_sp=80, w_out=82, gate_w=84, out=86, dbg=88, ws=90)
NONCE = 92
WS = 16
XTRA = 147456
SPIN = 100000

class VM:
    def __init__(self, a): self.a, self.q = a, []
    def issue(self, tag, n): self.q += [tag] * n
    def clear(self): self.q = []
    def count(self, tag):
        if tag not in self.q: return None
        last = len(self.q) - 1 - self.q[::-1].index(tag)
        return len(self.q) - 1 - last
    def wait(self, tag):
        n = self.count(tag)
        if n is not None:
            self.a(f"s_waitcnt vmcnt({n})")
            self.q = self.q[len(self.q) - n:]

def run_loader(a, vm, nst, nsteps, first, issue_stage, s_cnt, post=None, switch=None, unroll=1, nbar=None, start=0):
    for s in range(first, nst): issue_stage(s)
    s = start
    steady = None
    def one(s):
        vm.wait(s + 1); a("s_barrier")
        if s + nst < nsteps:
            if switch and (s + nst) in switch: switch[s + nst]()
            issue_stage(s + nst)
        elif post: post(s)
    bounds = sorted([k - nst for k in (switch or {})] + [nsteps - nst])
    while s < (nbar or nsteps):
        nb = min([b for b in bounds if b > s], default=None)
        rel = [t - s if isinstance(t, int) else t for t in vm.q]
        if nb is not None and steady == rel and nb - s >= 2 * unroll and not (switch and (s + nst) in switch):
            L = a.label("ld")
            n = (nb - s) // unroll
            a(f"s_mov_b32 s{s_cnt}, {n}\n{L}:")
            for u in range(unroll): one(s + u)
            a(f"s_sub_u32 s{s_cnt}, s{s_cnt}, 1\ns_cmp_lg_u32 s{s_cnt}, 0\ns_cbranch_scc1 {L}")
            assert [t - (s + unroll) if isinstance(t, int) else t for t in vm.q] == rel
            s = s + n * unroll
            vm.q = [t + s if isinstance(t, int) else t for t in rel]
            steady = None
        else:
            steady = rel
            one(s); s += 1

def get_nonce(a, vt, issued=False):
    L = a.label("nn"); D = a.label("nd")
    srd(a, 44, P['dbg'], 256)
    a(f"s_mov_b32 s56, 0\nv_mov_b32 v{vt+2}, 0")
    if issued:
        a(f"s_branch {L}_c")
    a(f"{L}:\nbuffer_load_dwordx2 {vr(vt,2)}, v{vt+2}, s[44:47], 0 offen sc1\n{L}_c:\ns_waitcnt vmcnt(0)")
    a(f"""
    v_readfirstlane_b32 s{NONCE}, v{vt}
    v_readfirstlane_b32 s{NONCE+1}, v{vt+1}
    s_add_u32 s56, s56, 1
    s_cmp_lg_u32 s{NONCE}, 0
    s_cbranch_scc1 {D}
    s_cmp_lt_u32 s56, {SPIN}
    s_cbranch_scc1 {L}
    {D}:
    """)

def flag_load(a, s_off, vt, n):
    a(f"v_and_b32 v{vt+2}, {31 if n > 16 else 15}, v0\nv_min_u32 v{vt+2}, {n-1}, v{vt+2}\nv_lshlrev_b32 v{vt+2}, 6, v{vt+2}")
    a(f"s_mov_b32 exec_hi, 0\ns_mov_b32 exec_lo, {(1 << n) - 1:#x}")
    a(f"buffer_load_dwordx2 {vr(vt,2)}, v{vt+2}, s[{WS}:{WS+3}], s{s_off} offen sc1\ns_mov_b64 exec, -1")

def poll_flags(a, s_off, vt, n, issued=False, sleep=2):
    L = a.label("pf"); D = a.label("pd")
    a(f"s_mov_b32 s56, 0")
    if issued: a(f"s_branch {L}_c")
    a(f"{L}:")
    flag_load(a, s_off, vt, n)
    a(f"""
    {L}_c:
    s_waitcnt vmcnt(0)
    v_cmp_eq_u64 vcc, s[{NONCE}:{NONCE+1}], {vr(vt,2)}
    s_and_b32 s36, vcc_lo, {(1 << n) - 1:#x}
    s_cmp_eq_u32 s36, {(1 << n) - 1:#x}
    s_cbranch_scc1 {D}
    s_sleep {sleep}
    s_add_u32 s56, s56, 1
    s_cmp_lt_u32 s56, {SPIN}
    s_cbranch_scc1 {L}
    {D}:
    """)

def poll_pipe(a, s_off, vt, n):
    L = a.label("pp"); mask = (1 << n) - 1
    a(f"v_and_b32 v{vt+6}, 15, v0\nv_min_u32 v{vt+6}, {n-1}, v{vt+6}\nv_lshlrev_b32 v{vt+6}, 6, v{vt+6}\ns_mov_b32 exec_hi, 0\ns_mov_b32 exec_lo, {mask:#x}\ns_mov_b32 s56, 0")
    ld = lambda k: f"buffer_load_dwordx2 {vr(vt+2*k,2)}, v{vt+6}, s[{WS}:{WS+3}], s{s_off} offen sc1"
    a(ld(0) + "\ns_sleep 3\n" + ld(1) + "\ns_sleep 3")
    a(f"{L}:")
    for k in range(3):
        a(ld((k + 2) % 3))
        a(f"s_waitcnt vmcnt(2)\nv_cmp_eq_u64 vcc, s[{NONCE}:{NONCE+1}], {vr(vt+2*k,2)}\ns_cmp_eq_u32 vcc_lo, {mask:#x}\ns_cbranch_scc1 {L}_d")
    a(f"s_add_u32 s56, s56, 1\ns_cmp_lt_u32 s56, {SPIN}\ns_cbranch_scc1 {L}\n{L}_d:\ns_mov_b64 exec, -1")

CNT = 155648
def set_flag(a, s_off, vt, cnt, nw, nwait=0):
    D = a.label("sf")
    a(f"""
    v_mov_b32 v{vt}, s{NONCE}
    v_mov_b32 v{vt+1}, s{NONCE+1}
    v_mov_b32 v{vt+2}, s{NONCE}
    v_mov_b32 v{vt+3}, s{NONCE+1}
    v_mov_b32 v{vt+4}, {CNT + 4*cnt}
    v_mov_b32 v{vt+5}, 1
    s_mov_b64 exec, 1
    s_waitcnt vmcnt({nwait})
    ds_add_rtn_u32 v{vt+5}, v{vt+4}, v{vt+5}
    s_mov_b64 exec, 15
    v_lshlrev_b32 v{vt+4}, 4, v0
    s_waitcnt lgkmcnt(0)
    v_readfirstlane_b32 s36, v{vt+5}
    s_cmp_lg_u32 s36, {nw-1}
    s_cbranch_scc1 {D}
    buffer_store_dwordx4 {vr(vt,4)}, v{vt+4}, s[{WS}:{WS+3}], s{s_off} offen sc1
    {D}:
    s_mov_b64 exec, -1
    """)

def gelu_list(regs_in, regs_out, T, CK0, CK1, CONE):
    L = []
    tt = [T + 2 * i for i in range(len(regs_in))]
    for r, t in zip(regs_in, tt): L.append(f"v_pk_mul_f32 {vr(t,2)}, {vr(r,2)}, {vr(r,2)}")
    for r, t in zip(regs_in, tt): L.append(f"v_pk_fma_f32 {vr(t,2)}, {vr(t,2)}, {vr(CK1,2)}, {vr(CK0,2)}")
    for r, t in zip(regs_in, tt): L.append(f"v_pk_mul_f32 {vr(t,2)}, {vr(t,2)}, {vr(r,2)}")
    for r, t in zip(regs_in, tt): L += [f"v_exp_f32 v{t}, v{t}", f"v_exp_f32 v{t+1}, v{t+1}"]
    for r, t in zip(regs_in, tt): L.append(f"v_pk_add_f32 {vr(t,2)}, {vr(t,2)}, {vr(CONE,2)}")
    for r, t in zip(regs_in, tt): L += [f"v_rcp_f32 v{t}, v{t}", f"v_rcp_f32 v{t+1}, v{t+1}"]
    for r, o, t in zip(regs_in, regs_out, tt): L.append(f"v_pk_mul_f32 {vr(o,2)}, {vr(r,2)}, {vr(t,2)}")
    return L

def gen(dev=False, rot=True, npf=5, pfm='split', spad=0, pad=0, gg=8, pipe=True, padit=1, snake=False, touch=0, seqat=0, lpub=0, yat=6, ramp=0, lprio=0, xb=(6, 13), wloop=False, mmaj=False, wsplit=False, barpos=-1, swp=True, z1pf=None, rot1=None, xpf=0, wpf0=0, pro=2, k4='half', wtail=False, shadow=True, nsh=3, early_at=29, tsh=16, upf=0, pfplan=None, rd4=12, xsc='', wisc='', tsc='', cprio=1, psleep=2, dbgwg=8, cpf=4, rs1=0.7, cuts=(0, 3, 7, 10, 14), usc=" sc1", hsc=" sc1", wsc=" sc1",
        upos=(0, 4, 8, 12), sched=None, aprio=0, dry=False, pf=True, wpf='cons', osc=' sc1 nt', p4mode='', csize=56, pfstart=19, halves=(2, 1, 2, 3), early=True):
    a = Asm('1')
    BARPOS[0] = barpos
    def st(slot, vt=30):
        if dev: stamp(a, 60, slot, WS, vt)
    a(f"""
    s_cmp_ge_u32 s2, 256
    s_cbranch_scc1 L_end
    s_load_dwordx16 s[64:79], s[0:1], 0
    s_load_dwordx8 s[80:87], s[0:1], 64
    s_load_dwordx4 s[88:91], s[0:1], 96
    v_lshrrev_b32 v1, 6, v0
    s_and_b32 s3, s2, 7
    v_readfirstlane_b32 s5, v1
    s_lshr_b32 s4, s2, 3
    v_and_b32 v0, 63, v0
    s_and_b32 s26, s5, 3
    s_lshr_b32 s27, s26, 1
    s_and_b32 s28, s26, 1
    s_cmp_ge_u32 s4, 28
    s_cbranch_scc1 L_side0
    """)
    XS, WI, S2, S3, TS = 20, 52, 44, 48, 8
    RB, CB = 24, 25
    NST, STG = 4, 32768
    VX, VW, VF, VT, VP = 96, 100, 104, 105, 109
    CK0, CK1, CONE, BS, DUM = 80, 82, 84, 124, 120
    S_LO, S_KS, S_KX, S_KW, S_CNT, S_WC = 31, 32, 33, 34, 35, 43
    S_KT, S_FB, S_KF = 12, 13, 14
    R1, R2, FR, AX, AW, VG = 128, 192, 32, 2, 4, 15
    EX1, RBL = 131072, 131072 + 8192
    tile_4x7(a, RB, CB, 37)
    a(f"s_lshl_b32 s40, s{RB}, 18\ns_lshl_b32 s37, s26, 5")
    kc_dma_voff(a, VX, 4, 40, 37, 11, 10, 11, 12, 13, perm=True)
    a(f"""
    v_lshrrev_b32 v10, 4, v0
    v_and_b32 v12, 15, v0
    s_lshl_b32 s37, s26, 4
    v_add_u32 v13, s37, v10
    v_mul_u32_u24 v13, 7168, v13
    s_lshl_b32 s37, s{CB}, 8
    v_add_u32 v11, s37, v13
    v_lshlrev_b32 v10, 1, v10
    v_xor_b32 v12, v12, v10
    """)
    for jj in range(4):
        a(f"v_xor_b32 v14, {8*(jj>>1)}, v12\nv_lshlrev_b32 v14, 4, v14\nv_add_u32 v14, v14, v11")
        a(f"v_add_u32 v{VW+jj}, {4*jj*7168 - 1024*jj}, v14")
    a(f"s_lshl_b32 s{S_LO}, s26, 12\ns_movk_i32 s{S_WC}, 3584")
    if rot1 is None: a(f"s_lshl_b32 s{S_KS}, s3, 1")
    else:
        tab = sum(v << (4 * i) for i, v in enumerate(rot1))
        a(f"s_lshl_b32 s37, s3, 2\ns_lshr_b32 s{S_KS}, {tab:#x}, s37\ns_and_b32 s{S_KS}, s{S_KS}, 15")
    a("s_waitcnt lgkmcnt(0)")
    srd(a, XS, P['x'], SIZE['x'])
    srd(a, WI, P['w_in'], SIZE['w_in'])
    def stage1_groups(tag):
        G = []
        for j in range(4):
            pre = [f"s_lshl_b32 s{S_KX}, s{S_KS}, 7", f"s_add_u32 m0, s{S_LO}, {(tag%4)*STG}", f"s_mul_i32 s{S_KW}, s{S_KS}, {64*7168}"] if j == 0 else []
            G.append(pre + [f"buffer_load_dwordx4 v{VX+j}, s[{XS}:{XS+3}], s{S_KX} offen offset:{1024*j}{xsc} lds"])
        for j in range(4):
            pre = [f"s_add_u32 m0, s{S_LO}, {(tag%4)*STG + 16384}", f"s_add_u32 s{S_KW}, s{S_KW}, s{S_WC}"] if j == 0 else []
            G.append(pre + [f"buffer_load_dwordx4 v{VW+j}, s[{WI}:{WI+3}], s{S_KW} offen offset:{1024*j}{wisc} lds"])
        G[-1] += [f"s_add_u32 s{S_KS}, s{S_KS}, 1", f"s_and_b32 s{S_KS}, s{S_KS}, 15"]
        return G
    def xgroups(tag):
        G = [([f"s_lshl_b32 s{S_KX}, s{S_KS}, 7", f"s_add_u32 m0, s{S_LO}, {(tag%4)*STG}", f"s_add_u32 s{S_KS}, s{S_KS}, 1"] if j == 0 else []) +
             [f"buffer_load_dwordx4 v{VX+j}, s[{XS}:{XS+3}], s{S_KX} offen offset:{1024*j}{xsc} lds"] for j in range(4)]
        G[1] = [f"s_and_b32 s{S_KS}, s{S_KS}, 15"] + G[1]
        return G
    def wgroups(tag):
        G = [([f"s_mul_i32 s{S_KW}, s{S_KS}, {64*7168}", f"s_add_u32 m0, s{S_LO}, {(tag%4)*STG + 16384}", f"s_add_u32 s{S_KS}, s{S_KS}, 1"] if j == 0 else []) +
             [f"buffer_load_dwordx4 v{VW+j}, s[{WI}:{WI+3}], s{S_KW} offen offset:{1024*j}{wisc} lds"] for j in range(4)]
        G[1] = [f"s_and_b32 s{S_KS}, s{S_KS}, 15"] + G[1]
        return G
    vm = VM(a)
    def stage1(tag):
        for g in stage1_groups(tag): a("\n".join(g))
        vm.issue(tag, 8)
    a("s_cmp_lt_u32 s5, 4\ns_cbranch_scc1 L_A0")
    for s in range(pro): stage1(s)
    a("L_A0:")
    srd(a, WS, P['ws'], 0x4000000)
    a(f"""
    s_or_b32 s37, s2, s5
    s_cmp_lg_u32 s37, 0
    s_cbranch_scc1 L_nopub
    s_memrealtime s[56:57]
    """)
    srd(a, S2, P['dbg'], 256)
    a(f"""
    v_mov_b32 v4, 0
    s_waitcnt lgkmcnt(0)
    s_or_b32 s56, s56, 1
    v_mov_b32 v2, s56
    v_mov_b32 v3, s57
    s_mov_b64 exec, 1
    buffer_store_dwordx2 v[2:3], v4, s[{S2}:{S2+3}], 0 offen sc1
    s_mov_b64 exec, -1
    L_nopub:
    """)
    st(0)
    kc_frag_addr(a, 12, 13, 14, 15, 16)
    a(f"""
    s_lshl_b32 s37, s27, 13
    v_add_u32 v{AX}, s37, v12
    v_add_u32 v{AX+1}, s37, v13
    v_lshrrev_b32 v{VG}, 4, v0
    v_bfe_u32 v16, v0, 2, 2
    v_lshl_add_u32 v17, v{VG}, 3, v16
    v_lshlrev_b32 v17, 8, v17
    v_and_b32 v18, 3, v0
    v_lshl_add_u32 v17, v18, 3, v17
    v_and_b32 v18, 1, v{VG}
    v_lshl_add_u32 v16, v18, 2, v16
    s_lshl_b32 s37, s28, 2
    v_xor_b32 v16, s37, v16
    """)
    for c in range(4): a(f"v_xor_b32 v18, {c}, v16\nv_lshl_add_u32 v{AW+c}, v18, 5, v17")
    for i in range(6): a(f"v_add_u32 v{20+i}, 0x10000, v{2+i}")
    a(f"""
    v_bfe_u32 v11, v0, 2, 2
    v_lshlrev_b32 v11, 3, v11
    v_and_b32 v16, 3, v0
    v_add_u32 v11, v11, v16           ; tperm(i)
    v_lshlrev_b32 v{VP}, 4, v0
    s_getpc_b64 s[58:59]
    L_pc:
    s_add_u32 s94, s58, L_gelu-L_pc
    s_addc_u32 s95, s59, 0
    s_add_u32 s96, s58, L_b4m-L_pc
    s_addc_u32 s97, s59, 0
    s_add_u32 s58, s58, L_b4-L_pc
    s_addc_u32 s59, s59, 0
    s_mov_b64 vcc, 0
    """)
    def callB(n): a(f"s_mov_b32 s{S_CNT}, {2*n}\ns_swappc_b64 s[62:63], s[58:59]")
    def callH(nh, phase):
        a(f"s_mov_b32 s{S_CNT}, {nh}\ns_swappc_b64 s[62:63], s[{58 if phase == 0 else 96}:{59 if phase == 0 else 97}]")
    def callG(): a("s_swappc_b64 s[62:63], s[94:95]")
    def acc(c, m): return R1 + (c * 4 + m) * 4
    def fx(buf, m): return FR + buf * 32 + m * 4
    def fw(buf, c): return FR + buf * 32 + 16 + c * 4
    def reads1(sl, kk, buf):
        hi, so = 18 * (sl >> 1), (sl & 1) * 32768
        x = lambda m: [f"ds_read_b128 {vr(fx(buf,m),4)}, v{AX+hi+kk} offset:{so+m*2048}"]
        w = lambda c: [f"ds_read_b64_tr_b16 {vr(fw(buf,c)+2*hh,2)}, v{AW+hi+c} offset:{so+16384+(32*kk+4*hh)*256}" for hh in range(2)]
        return w(0) + x(0) + x(1) + w(1) + x(2) + w(2) + x(3) + w(3)
    def mfmas1(buf):
        if mmaj: return [f"{MF} {vr(acc(c,m),4)}, {vr(fw(buf,c),4)}, {vr(fx(buf,m),4)}, {vr(acc(c,m),4)}" for m in range(4) for c in range(4)]
        return [f"{MF} {vr(acc(c,m),4)}, {vr(fw(buf,c),4)}, {vr(fx(buf,m),4)}, {vr(acc(c,m),4)}" for c in range(4) for m in (range(4) if not (snake and c & 1) else range(3, -1, -1))]
    def zeroR1():
        for i in range(64): a(f"v_mov_b32 v{R1+i}, 0")
    a("s_cmp_lt_u32 s5, 4\ns_cbranch_scc1 L_A")

    ACC, A1, FR3 = R1, R2, 32
    NW, YBASE = 14, 131072
    RB4, DB = 6, 7
    def tile4():
        a(f"""
        s_lshr_b32 s{RB4}, s3, 1
        s_lshl_b32 s{RB4}, s{RB4}, 2
        s_lshr_b32 s37, s4, 3
        s_add_u32 s{RB4}, s{RB4}, s37
        s_and_b32 s{DB}, s3, 1
        s_lshl_b32 s{DB}, s{DB}, 3
        s_and_b32 s37, s4, 7
        s_add_u32 s{DB}, s{DB}, s37
        """)
    WO = 20
    VU, VW4, VDW, WR = 8, 14, 16, 128
    S_UB, S_KU, S_KW4, S_KP = 33, 34, 40, 43
    def ks4(dst):
        if k4 == 'db': a(f"s_and_b32 s{dst}, s{DB}, 7\ns_mul_i32 s{dst}, s{dst}, 7\ns_lshr_b32 s{dst}, s{dst}, 1")
        elif k4 == 'db2': a(f"s_and_b32 s{dst}, s{DB}, 7\ns_mul_i32 s{dst}, s{dst}, 7\ns_lshr_b32 s{dst}, s{dst}, 1\ns_and_b32 s37, s3, 1\ns_lshl_b32 s37, s37, 1\ns_add_u32 s{dst}, s{dst}, s37")
        elif k4 == 'db4': a(f"s_and_b32 s{dst}, s{DB}, 3\ns_mul_i32 s{dst}, s{dst}, 7")
        elif k4 == 'half': a(f"s_and_b32 s{dst}, s3, 1\ns_mul_i32 s{dst}, s{dst}, 14")
        else: a(f"s_mul_i32 s{dst}, s3, 3")
    def l4_setup():
        tile4()
        srd(a, WO, P['w_out'], SIZE['w_out'])
        a(f"""
        v_lshlrev_b32 v{VU}, 4, v0
        s_lshl_b32 s41, s26, 11
        v_add_u32 v{VDW}, s41, v{VU}
        v_add_u32 v{VDW+1}, {7*8192}, v{VDW}
        v_lshrrev_b32 v10, 3, v0
        v_and_b32 v11, 7, v0
        v_bfe_u32 v12, v0, 4, 1
        v_lshlrev_b32 v12, 1, v12
        v_xor_b32 v11, v11, v12
        v_lshlrev_b32 v11, 4, v11
        s_lshl_b32 s37, s26, 4
        v_add_u32 v10, s37, v10
        v_lshlrev_b32 v10, 11, v10
        s_lshl_b32 s37, s{DB}, 7
        v_add_u32 v10, s37, v10
        v_add_u32 v{VW4}, v10, v11
        v_xor_b32 v11, 64, v11
        v_add_u32 v10, {8*2048 - 1024}, v10
        v_add_u32 v{VW4+1}, v10, v11
        """)
        ks4(S_KS)
        a(f"s_add_u32 s{S_KP}, s{S_KS}, 14\ns_sub_u32 s37, s{S_KP}, 28\ns_cmp_ge_u32 s{S_KP}, 28\ns_cselect_b32 s{S_KP}, s37, s{S_KP}")
    def wreg(vm, lo, hi):
        for st_ in range(lo, hi):
            a(f"s_lshl_b32 s{S_KW4}, s{S_KP}, 17\ns_add_u32 s{S_KP}, s{S_KP}, 1\ns_cmp_eq_u32 s{S_KP}, 28\ns_cselect_b32 s{S_KP}, 0, s{S_KP}")
            for j in range(2): a(f"buffer_load_dwordx4 {vr(WR+8*st_+4*j,4)}, v{VW4+j}, s[{WO}:{WO+3}], s{S_KW4} offen offset:{1024*j}")
            vm.issue("W", 2)
    def wdma(vm, lo, hi):
        for st_ in range(lo, hi):
            a(f"s_add_u32 m0, s41, {(st_%14)*8192}\ns_lshl_b32 s{S_KW4}, s{S_KS}, 17")
            for j in range(2): a(f"buffer_load_dwordx4 v{VW4+j}, s[{WO}:{WO+3}], s{S_KW4} offen offset:{1024*j} lds")
            a(f"s_add_u32 s{S_KS}, s{S_KS}, 1\ns_cmp_eq_u32 s{S_KS}, 28\ns_cselect_b32 s{S_KS}, 0, s{S_KS}")
            vm.issue("W", 2)
    def yaddr():
        a(f"""
        s_cmp_ge_u32 s{RB4}, 8
        s_cselect_b32 s42, -1, 1
        s_cselect_b32 s39, 1, 0
        s_lshl_b32 s37, s{RB4}, 7
        s_sub_u32 s52, 2048, s37
        s_cmp_ge_u32 s{RB4}, 8
        s_cselect_b32 s52, s52, s37
        s_lshl_b32 s53, s{DB}, 7
        s_sub_u32 s54, {2*960}, s53
        s_cmp_ge_u32 s{DB}, 8
        s_cselect_b32 s53, s54, s53
        s_cselect_b32 s54, 1, 0
        s_xor_b32 s39, s39, s54
        s_cmp_eq_u32 s39, 0
        s_mov_b32 s57, {YP_OFF}
        s_cmov_b32 s57, {YM_OFF}
        s_add_u32 s57, s57, s53
        s_mul_i32 s54, s26, 320
        s_movk_i32 s55, 7282
        """)
        for j in range(5):
            a(f"""
            v_add_u32 v10, s54, v0
            v_add_u32 v10, {64*j}, v10
            v_mul_u32_u24 v11, s55, v10
            v_lshrrev_b32 v11, 16, v11
            v_mul_u32_u24 v12, 9, v11
            v_sub_u32 v10, v10, v12
            v_min_u32 v11, 127, v11
            v_mul_lo_u32 v11, v11, s42
            v_add_u32 v11, s52, v11
            v_mul_u32_u24 v11, {YPITCH*2}, v11
            v_lshl_add_u32 v{18+j}, v10, 4, v11
            """)
        a(f"""
        s_lshr_b32 s40, s{RB4}, 2
        s_mov_b32 s53, 0
        s_cmp_eq_u32 s40, 1
        s_cmov_b32 s53, {2*512 + 1024}
        s_cmp_eq_u32 s40, 2
        s_cmov_b32 s53, {3*512 - 1024}
        s_cmp_eq_u32 s40, 3
        s_cmov_b32 s53, {1*512 + 2048}
        s_and_b32 s40, s40, 1
        s_cmp_eq_u32 s40, 1
        s_cselect_b32 s42, -1, 1
        s_lshl_b32 s40, s26, 5
        s_add_u32 s37, s37, s40
        v_and_b32 v10, 31, v0
        v_add_u32 v10, s37, v10
        v_mul_lo_u32 v11, v10, s42
        v_add_u32 v11, s53, v11
        """)
        for tv, idx in ((512, (SP_OFF - G_OFF)//4 + 2), (1536, (SP_OFF - G_OFF)//4 + 3), (1024, 1024)):
            a(f"v_mov_b32 v12, {idx}\nv_cmp_eq_u32 vcc, {tv}, v10\ns_nop 1\nv_cndmask_b32 v11, v11, v12, vcc")
        a(f"v_lshlrev_b32 v23, 2, v11")
    def ydma():
        a(f"s_mul_i32 s40, s26, 5120\ns_add_u32 s40, s40, {YBASE}")
        for j in range(0 if 'noy' in p4mode else 5):
            a(f"s_add_u32 m0, s40, {1024*j}\ns_nop 0\nbuffer_load_dwordx4 v{18+j}, s[{WS}:{WS+3}], s57 offen{hsc} lds")
        a(f"s_lshl_b32 s40, s26, 8\ns_add_u32 m0, s40, {YBASE + 20480}\ns_mov_b32 s40, {G_OFF}\nbuffer_load_dword v23, s[{WS}:{WS+3}], s40 offen{hsc} lds")
    def lds_wait(addr, val, lab):
        a(f"""
        v_mov_b32 v10, {addr}
        s_mov_b32 s56, 0
        {lab}:
        ds_read_b32 v11, v10
        s_add_u32 s56, s56, 1
        s_waitcnt lgkmcnt(0)
        v_readfirstlane_b32 s37, v11
        s_cmp_ge_u32 s37, {val}
        s_cbranch_scc1 {lab}_d
        s_sleep 1
        s_cmp_lt_u32 s56, {SPIN*16}
        s_cbranch_scc1 {lab}
        {lab}_d:
        """)
    srd(a, TS, P['w_sp'], SIZE['w_sp'])
    def l3_common(rowshift, s_rowbyte, perm, init=True):
        a(f"s_lshl_b32 s37, s26, 5")
        kc_dma_voff(a, VT, 4, s_rowbyte, 37, rowshift, 8, 9, 10, 16, perm=perm)
        if init: a(f"s_lshl_b32 s{S_LO}, s26, 12")
        a(f"v_lshlrev_b32 v{VF}, 4, v0\nv_add_u32 v{VF}, s{S_LO}, v{VF}")
    a(f"s_lshl_b32 s40, s{RB}, 19")
    l3_common(12, 40, True, init=False)
    a(f"s_lshl_b32 s{S_FB}, s{CB}, 19\ns_add_u32 s{S_FB}, s{S_FB}, {Z2_OFF}")
    a(f"s_lshl_b32 s{S_KT}, s3, 9" if rot else f"s_mov_b32 s{S_KT}, 0")
    def k3ops(vm, kmask, side=False):
        fo, to = (0, 16384) if side else (16384, 0)
        def Tgroups(slot, kt):
            return [([f"s_add_u32 m0, s{S_LO}, {slot*STG + to}", "s_nop 0"] if j == 0 else []) +
                    [f"buffer_load_dwordx4 v{VT+j}, s[{TS}:{TS+3}], s{kt} offen offset:{1024*j}{tsc} lds"] for j in range(4)]
        def Tpart(tag, slot, kt):
            for g in Tgroups(slot, kt): a("\n".join(g))
            vm.issue(tag, 4)
        def Fpart(tag):
            a(f"s_lshl_b32 s{S_KF}, s{S_KT}, 7\ns_add_u32 m0, s{S_LO}, {(tag%4)*STG + fo}\ns_add_u32 s{S_KF}, s{S_KF}, s{S_FB}")
            for j in range(4): a(f"buffer_load_dwordx4 v{VF}, s[{WS}:{WS+3}], s{S_KF} offen offset:{1024*j}{hsc} lds")
            vm.issue(tag, 4)
        def adv(): a(f"s_add_u32 s{S_KT}, s{S_KT}, 128\ns_and_b32 s{S_KT}, s{S_KT}, {kmask}")
        def full(tag): Fpart(tag); Tpart(tag, tag % 4, S_KT); adv()
        def preT():
            a(f"s_mov_b32 s41, s{S_KT}")
            for s in range(NST):
                Tpart(s, s, 41)
                a(f"s_add_u32 s41, s41, 128\ns_and_b32 s41, s41, {kmask}")
        def Fonly(tag): Fpart(tag); adv()
        return full, (preT if side else Tgroups), Fonly
    a(f"s_mov_b32 s41, s{S_KT}")
    full3, Tgroups, Fonly = k3ops(vm, 4095)
    a(f"s_mul_i32 s29, s3, 28\ns_add_u32 s29, s29, s4\ns_lshl_b32 s29, s29, 2\ns_add_u32 s29, s29, s26")
    srd(a, S3, P['w_sp'], SIZE['w_sp'])
    a(f"s_mul_i32 s29, s29, {npf*1024 if pfm == 'lin' else npf}")
    def pfo(sidx, add, dst, tmp):
        a(f"""
        s_lshr_b32 s{dst}, s{sidx}, 10
        s_and_b32 s{tmp}, s{sidx}, 1
        s_add_u32 s{dst}, s{dst}, s{tmp}
        s_add_u32 s{dst}, s{dst}, {add}
        s_and_b32 s{dst}, s{dst}, 3
        s_lshl_b32 s{dst}, s{dst}, 10
        s_lshr_b32 s{tmp}, s{sidx}, 1
        s_lshl_b32 s{tmp}, s{tmp}, 12
        s_add_u32 s{dst}, s{dst}, s{tmp}
        s_add_u32 s{sidx}, s{sidx}, 1
        """)
    def stage1p(tag):
        stage1(tag)
        plan = {int(k): v for k, v in (pfplan or {pfstart: npf}).items()}
        if pf and tag in plan:
            lo = sum(v for k, v in plan.items() if k < tag)
            for i in range(lo, lo + plan[tag]):
                if pfm == 'lin':
                    a(f"buffer_load_dwordx4 {vr(DUM,4)}, v{VP}, s[{S3}:{S3+3}], s29 offen offset:{(i%4)*1024}")
                    if i % 4 == 3: a("s_add_u32 s29, s29, 4096")
                else:
                    pfo(29, 0, 37, 40)
                    a(f"buffer_load_dwordx4 {vr(DUM,4)}, v{VP}, s[{S3}:{S3+3}], s37 offen")
            vm.issue("p", plan[tag])
    def post1(s):
        for g in Tgroups(s - 28, 41): a("\n".join(g))
        vm.issue("T", 4)
        a(f"s_add_u32 s41, s41, 128\ns_and_b32 s41, s41, 4095")
    if lpub:
        a(f"""
        v_lshrrev_b32 v16, 1, v{VG}
        v_and_b32 v17, 1, v{VG}
        v_lshl_add_u32 v19, v16, 5, v11
        v_lshl_add_u32 v19, v17, 2, v19
        v_lshlrev_b32 v19, 4, v19
        s_lshl_b32 s37, s27, 11
        s_add_u32 s37, s37, {EX1}
        v_add_u32 v16, s37, v{VP}
        s_mul_i32 s38, s{RB}, 14
        s_add_u32 s38, s38, s{CB}
        s_lshl_b32 s38, s38, 11
        s_lshl_b32 s40, s27, 10
        s_add_u32 s38, s38, s40
        s_add_u32 s38, s38, {ST_OFF}
        """)
    vm.wait(0); a("s_barrier")
    sw = {**{int(k): (lambda: None) for k in (pfplan or {pfstart: 0})}, 16: lambda: a(f"s_mov_b32 s{S_WC}, 0")}
    a(f"s_lshl_b32 s42, s{CB}, 10\ns_add_u32 s42, s42, {FL1_OFF}")
    if not early:
        run_loader(a, vm, NST, 32, pro, stage1p, S_CNT, post=post1, switch=sw, unroll=4)
        get_nonce(a, 24)
    else:
        E0 = early_at
        def stage1q(tag):
            if lpub and tag == 20:
                vm.wait("N")
                a(f"""
                ds_read_b64 v[26:27], v16
                ds_read_b64 v[24:25], v16 offset:1024
                v_readfirstlane_b32 s{NONCE}, v28
                s_cmp_lg_u32 s{NONCE}, 0
                s_cbranch_scc1 L_nok
                """)
                get_nonce(a, 28)
                a(f"L_nok:\ns_waitcnt lgkmcnt(0)\nv_pk_add_f32 v[26:27], v[26:27], v[24:25]")
                if lpub == 2: stage1p(tag)
                a(f"""
                s_cmp_eq_u32 s28, 0
                s_cselect_b32 exec_lo, -1, 0
                s_cselect_b32 exec_hi, 0, -1
                buffer_store_dwordx4 v[26:29], v19, s[{WS}:{WS+3}], s38 offen sc1
                s_mov_b64 exec, -1
                """)
                vm.issue("P", 1)
                if lpub == 2: return
            if tag == (12 if lpub else 24):
                srd(a, S2, P['dbg'], 256)
                a(f"v_mov_b32 v30, 0\nbuffer_load_dwordx2 v[28:29], v30, s[{S2}:{S2+3}], 0 offen sc1"); vm.issue("N", 1)
            if tag == E0 + 2:
                vm.wait("N")
                a(f"v_readfirstlane_b32 s{NONCE}, v28\nv_readfirstlane_b32 s{NONCE+1}, v29")
                flag_load(a, 42, 24, 16); vm.issue("Q", 1)
            stage1p(tag)
        sw[24] = lambda: None; sw[E0 + 2] = lambda: None
        if lpub:
            sw[12] = lambda: None; sw[20] = lambda: None
        assert E0 + 2 < 32
        run_loader(a, vm, NST, 32, pro, stage1q, S_CNT, post=post1, switch=sw, unroll=4, nbar=E0 - 1)
        s_ = E0 - 1
        vm.wait(s_ + 1); a("s_barrier")
        if s_ + NST < 32: stage1p(s_ + NST)
        else: post1(s_)
        vm.wait("Q")
        a(f"v_cmp_eq_u64 vcc, s[{NONCE}:{NONCE+1}], v[24:25]\ns_and_b32 s36, vcc_lo, 0xffff\ns_cmp_lg_u32 s{NONCE}, 0\ns_cselect_b32 s36, s36, 0\ns_cmp_eq_u32 s36, 0xffff\ns_cbranch_scc0 L_late")
        q0 = list(vm.q)
        for j in range(max(0, E0 - 28)): Fonly(100 + j)
        S_ = E0
        for s_ in range(E0, 32):
            vm.wait(s_ + 1); a("s_barrier")
            if s_ + NST < 32: stage1p(s_ + NST)
            else:
                post1(s_); vm.q = [(100 + s_ - 28) if t == "T" else t for t in vm.q]; Fonly(100 + s_ - 28)
        vm.wait(100); a("s_barrier")
        vm.q = [t - 100 for t in vm.q]
        for s_ in range(2):
            vm.wait(s_ + 1); a("s_barrier"); full3(s_ + 4)
        qe = list(vm.q)
        a("s_branch L_p3go\nL_late:")
        vm.q = q0
        for s_ in range(E0, 32):
            vm.wait(s_ + 1); a("s_barrier")
            if s_ + NST < 32: stage1p(s_ + NST)
            else: post1(s_)
        get_nonce(a, 24)
    poll_flags(a, 42, 24, 16)
    vm.clear()
    Fonly(0); Fonly(1); vm.wait(0); a("s_barrier"); Fonly(2); Fonly(3)
    for s_ in range(2):
        vm.wait(s_ + 1); a("s_barrier"); full3(s_ + 4)
    if early:
        a("L_p3go:")
        assert qe[-16:] == vm.q[-16:] and vm.count(3) == 16
    l4_setup()
    run_loader(a, vm, NST, 32, 4, full3, S_CNT, post=(lambda s_: wdma(vm, 4 * (s_ - 28), min(4 * (s_ - 27), 14))) if (wtail or wloop) else (lambda s_: wreg(vm, cuts[s_-28], cuts[s_-27])), unroll=4, start=2)
    def fly1():
        a(f"s_mov_b32 s42, {FLY_OFF}"); flag_load(a, 42, 28, 32); yaddr()
    if yat == 0: fly1()
    if not (wtail or wloop):
        if not wsplit: lds_wait(CNT + 16, 4, "L3_stw")
        wreg(vm, cuts[4], 14)
    a(f"L4_load:\ns_setprio {lprio}")
    vm = VM(a)
    if yat == 0:
        a(f"s_waitcnt vmcnt(0)\nv_cmp_eq_u64 vcc, s[{NONCE}:{NONCE+1}], v[28:29]\ns_cmp_eq_u32 vcc_lo, -1\ns_cselect_b32 s33, 1, 0")
    if not (wtail or wsplit or wloop): wdma(vm, 0, NW)
    if yat != 0: yaddr()
    else:
        a("s_cmp_eq_u32 s33, 0\ns_cbranch_scc1 L4_ny"); ydma(); a("s_branch L4_ny2\nL4_ny:\ns_waitcnt vmcnt(0)\nL4_ny2:")
    def Wwr(j_):
        for j in range(0 if 'nowr' in p4mode else 2): a(f"ds_write_b128 v{VDW + j_//7}, {vr(WR+8*j_+4*j,4)} offset:{(j_%7)*8192 + 1024*j}")
    if wtail:
        assert k4 == 'half'
        a("s_waitcnt vmcnt(0)")
        lds_wait(CNT + 4, 4, "L4_drn")
        a(f"s_lshl_b32 s42, s{RB4}, 10\ns_add_u32 s42, s42, {FL3_OFF}\ns_and_b32 s38, s3, 1\ns_mul_i32 s38, s38, 448\ns_add_u32 s38, s38, s42")
        a("s_cmp_lg_u32 s26, 0\ns_cbranch_scc1 L4_wr")
        poll_pipe(a, 38, 24, 7)
        a("s_barrier\nL4_wr:")
        wreg(vm, 0, 14)
        a("s_cmp_eq_u32 s26, 0\ns_cbranch_scc1 L4_pp\ns_barrier\nL4_pp:")
        a(f"s_cmp_lg_u32 s26, 0\ns_cbranch_scc1 L4_lw2")
        poll_flags(a, 42, 24, 14, sleep=psleep)
        a(f"s_mov_b32 s42, {FLY_OFF}")
        poll_flags(a, 42, 24, 32, sleep=8)
        a("L4_lw2:\ns_waitcnt vmcnt(0)\ns_barrier")
        for j in range(7): Wwr(j)
    elif wsplit:
        lds_wait(CNT + 4, 4, "L4_drn")
        wdma(vm, 0, 7)
        a(f"s_lshl_b32 s42, s{RB4}, 10\ns_add_u32 s42, s42, {FL3_OFF}\ns_and_b32 s38, s3, 1\ns_mul_i32 s38, s38, 448\ns_add_u32 s38, s38, s42")
        a("s_cmp_lg_u32 s26, 0\ns_cbranch_scc1 L4_wr")
        poll_pipe(a, 38, 24, 7)
        a("s_barrier\nL4_wr:")
        wdma(vm, 7, 14)
        a("s_cmp_eq_u32 s26, 0\ns_cbranch_scc1 L4_pp\ns_waitcnt vmcnt(14)\ns_barrier\ns_branch L4_lw2\nL4_pp:")
        poll_flags(a, 42, 24, 14, sleep=psleep)
        a(f"s_mov_b32 s42, {FLY_OFF}")
        poll_flags(a, 42, 24, 32, sleep=8)
        a("L4_lw2:\ns_waitcnt vmcnt(0)\ns_barrier")
        for j in range(7): Wwr(j)
    else: a(f"s_cmp_lg_u32 s26, 0\ns_cbranch_scc1 L4_lwait")
    if wtail or wsplit: pass
    elif k4 != 'half':
        a(f"s_mov_b32 s42, {FLY_OFF}")
        poll_flags(a, 42, 24, 32, sleep=8)
        a(f"s_lshl_b32 s42, s{RB4}, 10\ns_add_u32 s42, s42, {FL3_OFF}")
        if pipe: poll_pipe(a, 42, 24, 14)
        else: poll_flags(a, 42, 24, 14, sleep=psleep)
        a("L4_lwait:\ns_waitcnt vmcnt(0)\ns_barrier")
    else:
        a(f"s_lshl_b32 s42, s{RB4}, 10\ns_add_u32 s42, s42, {FL3_OFF}\ns_and_b32 s43, s3, 1\ns_mul_i32 s43, s43, 448\ns_add_u32 s43, s43, s42")
        poll_pipe(a, 43, 24, 7)
        a(f"L4_lwait:\ns_waitcnt vmcnt({6 if yat == 0 else 0})\ns_barrier")
        if len(xb) == 4:
            a("s_barrier"); wdma(vm, 14, 18)
        a(f"s_cmp_lg_u32 s26, 0\ns_cbranch_scc1 L4_lw2")
        poll_flags(a, 42, 24, 14, sleep=psleep)
        a(f"s_mov_b32 s42, {FLY_OFF}")
        poll_flags(a, 42, 24, 32, sleep=8)
        a("L4_lw2:\ns_barrier")
        if wloop: wdma(vm, 18 if len(xb) == 4 else 14, 21)
        else:
            for j in range(7): Wwr(j)
    if upf:
        a(f"""
        s_mul_i32 s33, s{RB4}, {28*16384}
        s_add_u32 s33, s33, {U_OFF}
        s_lshl_b32 s40, s26, 12
        s_add_u32 s33, s33, s40
        s_and_b32 s34, s{DB}, 7
        s_add_u32 s34, s34, {upf}
        """)
        a(f"s_mul_i32 s40, s3, 3\ns_add_u32 s34, s34, s40" if rot else "")
        for i in range(3):
            a(f"s_sub_u32 s40, s34, 28\ns_cmp_ge_u32 s34, 28\ns_cselect_b32 s34, s40, s34\ns_lshl_b32 s40, s34, 14\ns_add_u32 s40, s40, s33")
            for j in range(4): a(f"buffer_load_dwordx4 v[28:31], v{VU}, s[{WS}:{WS+3}], s40 offen offset:{1024*j}{usc}")
            a("s_add_u32 s34, s34, 8")
    if yat == 6: ydma()
    if yat == 0:
        a("s_cmp_eq_u32 s33, 1\ns_cbranch_scc1 L4_y2"); ydma(); a("L4_y2:")
    if k4 != 'half':
        a("s_barrier")
        for j in range(7): Wwr(j)
    if len(xb) == 4:
        a("s_barrier"); wdma(vm, 21, 25)
        a("s_waitcnt vmcnt(14)\ns_barrier"); wdma(vm, 25, 28)
        a("s_barrier")
        a("s_waitcnt vmcnt(0)\ns_barrier\ns_barrier\ns_barrier\ns_endpgm")
    a(f"s_waitcnt vmcnt({6 if wloop else 63}) lgkmcnt(0)\ns_barrier")
    if wloop: wdma(vm, 21, 28)
    else:
        for j in range(7, 14): Wwr(j)
    if yat == 13: ydma()
    a("s_waitcnt lgkmcnt(0)\ns_barrier")
    if yat == 20: ydma()
    a("s_waitcnt vmcnt(0)\ns_barrier\ns_endpgm")

    a("L_A:")
    if xpf:
        a(f"s_lshl_b32 s37, s4, 2\ns_add_u32 s37, s37, s26\ns_mul_i32 s40, s37, {xpf*1024}\ns_min_u32 s40, s40, {512*1024 - xpf*1024}\ns_lshl_b32 s36, s3, 19\ns_add_u32 s40, s40, s36")
        for i in range(xpf):
            a(f"buffer_load_dwordx4 {vr(DUM,4)}, v{VP}, s[{XS}:{XS+3}], s40 offen offset:{(i%4)*1024}")
            if i % 4 == 3: a("s_add_u32 s40, s40, 4096")
    if wpf0:
        a(f"s_mul_i32 s37, s37, {wpf0}\ns_lshr_b32 s36, s3, 1\ns_lshl_b32 s36, s36, 9\ns_add_u32 s37, s37, s36\ns_and_b32 s36, s3, 1\ns_mul_i32 s36, s36, 1792\ns_add_u32 s36, s36, {3584*1}")
        for i in range(wpf0):
            a(f"s_lshr_b32 s40, s37, 1\ns_mul_i32 s40, s40, 7168\ns_and_b32 s41, s37, 1\ns_mul_i32 s41, s41, 768\ns_add_u32 s40, s40, s41\ns_add_u32 s40, s40, s36\ns_add_u32 s37, s37, 1")
            a(f"buffer_load_dwordx4 {vr(DUM,4)}, v{VP}, s[{WI}:{WI+3}], s40 offen")
    if cpf:
        n = (csize + 4 * cpf - 1) // (4 * cpf)
        a(f"""
        s_cmp_ge_u32 s4, {cpf}
        s_cbranch_scc1 L_nocpf
        s_sub_u32 s56, s58, L_b4-fused_kernel
        s_subb_u32 s57, s59, 0
        s_lshl_b32 s37, s4, 2
        s_add_u32 s37, s37, s26
        s_mul_i32 s37, s37, {n*1024}
        v_add_u32 v16, s37, v{VP}
        v_min_u32 v16, L_end-fused_kernel-{n*1024}, v16
        """)
        for i in range(n):
            a(f"global_load_dwordx4 {vr(DUM,4)}, v16, s[56:57] offset:{(i%4)*1024}")
            if i % 4 == 3: a("v_add_u32 v16, 4096, v16")
        a("L_nocpf:")
    if touch:
        regs = [("ws", 0x800000, 0x1F00000), ("out", 0, SIZE['out']), ("w_sp", 0, SIZE['w_sp']), ("w_out", 0, SIZE['w_out'])]
        a(f"s_sub_u32 s37, s4, 4\ns_cmp_ge_u32 s37, {touch}\ns_cbranch_scc1 L_notouch\ns_lshl_b32 s37, s37, 2\ns_add_u32 s37, s37, s26\ns_lshl_b32 s37, s37, {tsh+6}\nv_lshlrev_b32 v16, {tsh}, v0")
        for nm, lo, hi in regs:
            srd(a, S3, P[nm], hi)
            a(f"s_add_u32 s40, s37, {lo}")
            for i in range(((hi - lo) >> (tsh + 6)) // (4 * touch) + 1):
                a(f"buffer_load_dword v{DUM}, v16, s[{S3}:{S3+3}], s40 offen sc1\ns_add_u32 s40, s40, {(4*touch) << (tsh+6)}")
        a("L_notouch:")
    for c in range(4): a(f"v_mov_b32 v{BS+c}, 0")
    srd(a, S3, P['b_sp'], SIZE['b_sp'])
    if dry: callG()
    else: zeroR1()
    a(f"""
    v_mov_b32 v16, {CNT}
    ds_write_b128 v16, {vr(R1,4)}
    ds_write_b128 v16, {vr(R1,4)} offset:16
    s_lshl_b32 s37, s26, 10
    s_add_u32 s37, s37, {EX1}
    v_add_u32 v14, s37, v{VP}
    ds_write_b128 v14, {vr(R1,4)}
    ds_write_b128 v14, {vr(R1,4)} offset:4096
    v_lshrrev_b32 v16, 1, v{VG}       ; g>>1
    v_and_b32 v17, 1, v{VG}           ; g&1
    v_lshl_add_u32 v19, v16, 5, v11
    v_lshl_add_u32 v19, v17, 2, v19
    v_lshlrev_b32 v19, 4, v19
    v_and_b32 v12, 7, v0              ; h
    s_lshl_b32 s37, s28, 2
    v_add_u32 v17, s37, v17
    v_xor_b32 v12, v12, v17
    v_lshlrev_b32 v12, 5, v12
    v_lshl_add_u32 v12, v16, 4, v12
    v_lshl_add_u32 v12, v11, 8, v12
    v_xor_b32 v13, 64, v12
    v_and_b32 v16, 15, v0
    s_lshl_b32 s37, s26, 9
    s_add_u32 s37, s37, {RBL}
    v_lshlrev_b32 v1, 4, v16
    v_add_u32 v1, s37, v1
    v_lshl_add_u32 v18, v{VG}, 2, v1
    s_setprio {cprio}
    s_waitcnt lgkmcnt(0)
    s_barrier
    """)
    st(1)
    a("\n".join(reads1(0, 0, 0)))
    srd(a, S2, P['dbg'], 256)
    a(f"v_mov_b32 v10, 0\nbuffer_load_dwordx2 v[8:9], v10, s[{S2}:{S2+3}], 0 offen sc1")
    if z1pf is None: callB(4)
    else:
        if z1pf: callH(z1pf, 0)
        a(f"s_lshl_b32 s37, s4, 2\ns_add_u32 s37, s37, s26\ns_mul_i32 s37, s37, 5\ns_min_u32 s37, s37, 507\ns_lshr_b32 s36, s3, 1\ns_lshl_b32 s36, s36, 9\ns_add_u32 s37, s37, s36\ns_and_b32 s36, s3, 1\ns_mul_i32 s36, s36, 1792")
        for i in range(5):
            a(f"s_lshr_b32 s40, s37, 1\ns_mul_i32 s40, s40, 7168\ns_and_b32 s41, s37, 1\ns_mul_i32 s41, s41, 768\ns_add_u32 s40, s40, s41\ns_add_u32 s40, s40, s36\ns_add_u32 s37, s37, 1")
            a(f"buffer_load_dwordx4 {vr(DUM,4)}, v{VP}, s[{WI}:{WI+3}], s40 offen")
        callH(8 - z1pf, z1pf % 2)
    st(2)
    get_nonce(a, 8, issued=True)
    a(f"v_mov_b32 v28, s{NONCE}\nv_mov_b32 v29, s{NONCE+1}")
    T = 32
    GL = [gelu_list([R1 + 8 * g + 2 * i for i in range(4)], [R2 + 8 * g + 2 * i for i in range(4)], T + 8 * (g & 1), CK0, CK1, CONE) for g in range(8)]
    z = lambda c, m, h: vr(R2 + (c * 4 + m) * 4 + 2 * h, 2)
    S, Q = 64 + 8, 64 + 16
    ST_ = []
    for m in range(4):
        s_, q = vr(S + 2 * m, 2), vr(Q + 2 * m, 2)
        ops = [(c, h) for c in range(4) for h in range(2)]
        ST_ += [f"v_pk_add_f32 {s_}, {z(0,m,0)}, {z(0,m,1)}", f"v_pk_mul_f32 {q}, {z(0,m,0)}, {z(0,m,0)}", f"v_pk_fma_f32 {q}, {z(0,m,1)}, {z(0,m,1)}, {q}"]
        for c, h in ops[2:]: ST_ += [f"v_pk_add_f32 {s_}, {s_}, {z(c,m,h)}", f"v_pk_fma_f32 {q}, {z(c,m,h)}, {z(c,m,h)}, {q}"]
    def st_tail(S, Q):
        X = []
        for m in range(4): X += [f"v_add_f32 v{S+2*m}, v{S+2*m}, v{S+2*m+1}", f"v_add_f32 v{Q+2*m}, v{Q+2*m}, v{Q+2*m+1}"]
        X += ["s_nop 1"]
        for B in (S, Q): X += [f"v_permlane16_swap_b32 v{B}, v{B+2}", f"v_permlane16_swap_b32 v{B+4}, v{B+6}"]
        for B in (S, Q): X += [f"v_add_f32 v{B}, v{B}, v{B+2}", f"v_add_f32 v{B+4}, v{B+4}, v{B+6}"]
        X += ["s_nop 1", f"v_permlane32_swap_b32 v{S}, v{S+4}", f"v_permlane32_swap_b32 v{Q}, v{Q+4}",
              f"v_add_f32 v64, v{S}, v{S+4}", f"v_add_f32 v65, v{Q}, v{Q+4}"]
        return X
    ST_ += st_tail(S, Q)
    def sibling(G, off, lab):
        a(f"""
        v_mov_b32 v{G+2}, 1
        v_mov_b32 v{G+3}, 1
        v_xor_b32 v17, 1024, v14
        ds_write_b128 v14, {vr(G,4)} offset:{off}
        s_mov_b32 s56, 0
        {lab}:
        ds_read_b128 {vr(G+4,4)}, v17 offset:{off}
        s_add_u32 s56, s56, 1
        s_waitcnt lgkmcnt(0)
        v_cmp_eq_u32 vcc, 1, v{G+6}
        s_cmp_eq_u64 vcc, -1
        s_cbranch_scc1 {lab}_ok
        s_cmp_lt_u32 s56, {SPIN*8}
        s_cbranch_scc1 {lab}
        {lab}_ok:
        """)
    def publish():
        if lpub:
            a(f"""
            ds_write_b64 v14, v[64:65]
            s_mul_i32 s37, s{RB}, 14
            s_lshl_b32 s37, s37, 11
            s_lshl_b32 s40, s27, 10
            s_add_u32 s37, s37, s40
            s_add_u32 s37, s37, {ST_OFF}
            s_mul_i32 s40, s28, {7*2048}
            s_add_u32 s57, s37, s40
            """)
            st(4)
            return
        sibling(64, 0, "L1_sibA")
        a(f"""
        v_pk_add_f32 v[26:27], v[64:65], v[68:69]
        s_mul_i32 s37, s{RB}, 14
        s_lshl_b32 s37, s37, 11
        s_lshl_b32 s40, s27, 10
        s_add_u32 s37, s37, s40
        s_add_u32 s37, s37, {ST_OFF}
        s_lshl_b32 s40, s{CB}, 11
        s_add_u32 s40, s40, s37
        s_cmp_eq_u32 s28, 0
        s_cselect_b32 exec_lo, -1, 0
        s_cselect_b32 exec_hi, 0, -1
        buffer_store_dwordx4 v[26:29], v19, s[{WS}:{WS+3}], s40 offen sc1
        s_mov_b64 exec, -1
        s_mul_i32 s40, s28, {7*2048}
        s_add_u32 s57, s37, s40
        """)
        st(4)
    G = 96
    def gload(rec=True):
        a("s_mov_b32 s40, s57")
        for i in range(7):
            a(f"buffer_load_dwordx4 {vr(G+4*i,4)}, v19, s[{WS}:{WS+3}], s40 offen offset:{2048*(i&1)} sc1")
            if i & 1: a("s_add_u32 s40, s40, 4096")
    RR, BB = 96, 100
    def check():
        st(5)
        a("s_waitcnt vmcnt(0)")
        a(f"s_mov_b32 s56, 0\ns_branch L1_chk\nL1_poll:")
        gload(False)
        a("s_waitcnt vmcnt(0)\nL1_chk:\ns_mov_b64 s[38:39], -1")
        for i in range(7):
            a(f"v_cmp_eq_u64 vcc, s[{NONCE}:{NONCE+1}], {vr(G+4*i+2,2)}\ns_and_b64 s[38:39], s[38:39], vcc")
        a(f"""
        s_cmp_eq_u64 s[38:39], -1
        s_cbranch_scc1 L1_ok
        s_sleep 2
        s_add_u32 s56, s56, 1
        s_cmp_lt_u32 s56, {SPIN}
        s_cbranch_scc1 L1_poll
        L1_ok:
        """)
        for i in range(1, 7): a(f"v_pk_add_f32 {vr(G,2)}, {vr(G,2)}, {vr(G+4*i,2)}")
        sibling(G, 4096, "L1_sibB")
        a(f"""
        v_pk_add_f32 {vr(G,2)}, {vr(G,2)}, {vr(G+4,2)}
        v_mul_f32 v{G}, {fl(1/1792)}, v{G}
        v_mul_f32 v{G+1}, {fl(1/1792)}, v{G+1}
        v_fma_f32 v{G+1}, -v{G}, v{G}, v{G+1}
        v_max_f32 v{G+1}, 0, v{G+1}
        v_add_f32 v{G+1}, {fl(1e-5)}, v{G+1}
        v_rsq_f32 v{G+1}, v{G+1}
        s_nop 0
        v_mul_f32 v{G}, v{G}, v{G+1}
        v_sub_f32 v{G}, 0, v{G}
        ds_write_b32 v18, v{G+1}
        ds_write_b32 v18, v{G} offset:256
        ds_read_b128 {vr(RR,4)}, v1
        ds_read_b128 {vr(BB,4)}, v1 offset:256
        s_lshl_b32 s40, s{CB}, 5
        s_lshl_b32 s37, s{RB}, 1
        s_add_u32 s40, s40, s37
        s_add_u32 s40, s40, s27
        s_lshl_b32 s40, s40, 14
        s_add_u32 s29, s40, {Z2_OFF}
        s_add_u32 s30, s29, 8192
        s_waitcnt lgkmcnt(0)
        """)
    NM = []
    for m in range(4):
        sel = "op_sel_hi:[1,0,0]" if m % 2 == 0 else "op_sel:[0,1,1] op_sel_hi:[1,1,1]"
        for cp in range(2):
            t = 64 + 4 * (m * 2 + cp)
            L = []
            for h in range(2):
                for d in range(2): L.append(f"v_pk_fma_f32 {z(2*cp+h,m,d)}, {z(2*cp+h,m,d)}, {vr(RR+(m&2),2)}, {vr(BB+(m&2),2)} {sel}")
            for h in range(2):
                zz = R2 + ((2 * cp + h) * 4 + m) * 4
                L += [f"v_cvt_pk_bf16_f32 v{t+2*h}, v{zz}, v{zz+1}", f"v_cvt_pk_bf16_f32 v{t+2*h+1}, v{zz+2}, v{zz+3}"]
            L += [f"s_nop 1\nv_permlane16_swap_b32 v{t}, v{t+2}\nv_permlane16_swap_b32 v{t+1}, v{t+3}\n"
                  f"buffer_store_dwordx4 {vr(t,4)}, v{12+cp}, s[{WS}:{WS+3}], s{29 + (m>>1)} offen offset:{1024*(m&1)}{wsc}"]
            NM.append(L)
    if not swp:
        callG()
        a("\n".join(ST_))
    else:
        K0r, K1r, ONE, SA, QA = 88, 90, 92, 96, 104
        a(f"v_mov_b32 v{K0r}, {fl(K0)}\nv_mov_b32 v{K0r+1}, {fl(K0)}\nv_mov_b32 v{K1r}, {fl(K1C)}\nv_mov_b32 v{K1r+1}, {fl(K1C)}\nv_mov_b32 v{ONE}, 1.0\nv_mov_b32 v{ONE+1}, 1.0")
        def parts(g):
            L = gelu_list([R1 + 8 * g + 2 * i for i in range(4)], [R2 + 8 * g + 2 * i for i in range(4)], 64 + 8 * (g % 3), K0r, K1r, ONE)
            A_, E_, B_, R_, C_ = L[:12], L[12:20], L[20:24], L[24:32], L[32:36]
            Z = [f"v_pk_mov_b32 {vr(R1+8*g+2*i,2)}, 0, 0" for i in range(4)]
            St = []
            for i in range(4):
                m = (2 * g + (i >> 1)) & 3; zz = vr(R2 + 8 * g + 2 * i, 2); s_ = vr(SA + 2 * m, 2); q_ = vr(QA + 2 * m, 2)
                if g < 2 and i % 2 == 0: St += [f"v_pk_mov_b32 {s_}, {zz}, {zz} op_sel:[0,1]", f"v_pk_mul_f32 {q_}, {zz}, {zz}"]
                else: St += [f"v_pk_add_f32 {s_}, {s_}, {zz}", f"v_pk_fma_f32 {q_}, {zz}, {zz}, {q_}"]
            return A_, E_, B_, R_, C_ + Z, St
        def mix(t, o):
            out = []
            for i, x in enumerate(t):
                out.append(x); out += o[len(o) * i // len(t): len(o) * (i + 1) // len(t)]
            return out
        PP = [parts(g) for g in range(8)]
        a("\n".join(PP[0][0]))
        for g in range(8):
            a("\n".join(mix(PP[g][1], (PP[g + 1][0] if g < 7 else []) + (PP[g - 2][5] if g >= 2 else []))))
            if g == 0: a("s_nop 0")
            a("\n".join(PP[g][2]))
            a("\n".join(mix(PP[g][3], PP[g - 1][4] if g >= 1 else [])))
        a("\n".join(PP[6][5] + PP[7][4][:4] + PP[7][4][4:] + PP[7][5]))
        a("\n".join(x.replace("S_", "") for x in st_tail(SA, QA)))
    publish()
    hs_ = halves
    ph = 0
    callH(hs_[0], ph); ph = (ph + hs_[0]) % 2
    gload()
    callH(hs_[1], ph); ph = (ph + hs_[1]) % 2
    check()
    for L in NM: a("\n".join(L))
    st(6)
    callH(hs_[2], ph); ph = (ph + hs_[2]) % 2
    a(f"s_lshl_b32 s40, s{CB}, 4\ns_add_u32 s40, s40, s{RB}\ns_lshl_b32 s40, s40, 6\ns_add_u32 s40, s40, {FL1_OFF}")
    set_flag(a, 40, 96, 0, 4)
    a(f"s_lshl_b32 s37, s{RB}, 7\ns_lshl_b32 s40, s27, 6\ns_add_u32 s37, s37, s40\nv_add_u32 v16, s37, v11\nv_lshlrev_b32 v16, 1, v16")
    for c in range(4): a(f"buffer_load_ushort v{BS+c}, v16, s[{S3}:{S3+3}], 0 offen offset:{64*(c>>1)+8*(c&1)}")
    def wpfetch():
        srd(a, S3, P['w_out'], SIZE['w_out'])
        a(f"s_mul_i32 s37, s3, 28\ns_add_u32 s37, s37, s4\ns_lshl_b32 s37, s37, 2\ns_add_u32 s37, s37, s26\ns_lshl_b32 s37, s37, 12\nv_lshlrev_b32 v{VP}, 4, v0")
        for j in range(4): a(f"buffer_load_dwordx4 {vr(DUM,4)}, v{VP}, s[{S3}:{S3+3}], s37 offen offset:{1024*j}")
    st(3)
    callH(hs_[3], ph)
    st(14)
    a("s_waitcnt vmcnt(0)")
    for c in range(4): a(f"v_lshlrev_b32 v{BS+c}, 16, v{BS+c}")
    if not shadow:
        wpfetch()
        callG()
    else:
        a(f"s_mov_b32 s36, {fl(K1C)}\nv_mov_b32 v104, {fl(K0)}\ns_nop 1")
        for r in range(0, 64, 2):
            m = (r >> 2) & 3
            a(f"v_pk_mov_b32 {vr(R2+r,2)}, {vr(R1+r,2)}, {vr(R1+r,2)} op_sel:[0,1]")
            a(f"v_pk_mov_b32 {vr(R1+r,2)}, {vr(BS+(m&2),2)}, {vr(BS+(m&2),2)} op_sel:[{m&1},{m&1}]")
    st(7)
    a(f"s_waitcnt lgkmcnt(0)\ns_barrier")
    st(8)
    a("\n".join(reads1(0, 0, 0)))
    if shadow:
        F = []
        for g in range(16):
            xs = [R2 + 4 * g + i for i in range(4)]; ts = [96 + 4 * (g & 1) + i for i in range(4)]
            for pat in ("v_mul_f32 v{t}, v{x}, v{x}", "v_fma_f32 v{t}, v{t}, s36, v104", "v_mul_f32 v{t}, v{t}, v{x}", "v_exp_f32 v{t}, v{t}",
                        "v_add_f32 v{t}, 1.0, v{t}", "v_rcp_f32 v{t}, v{t}", "v_mul_f32 v{x}, v{x}, v{t}"):
                F += [pat.format(t=t, x=x) for x, t in zip(xs, ts)]
        nsub = 8 * nsh
        for b in range(nsh):
            def ex(sl, ss, b=b):
                k = b * 8 + sl * 2 + ss
                return spread(16, F[len(F) * k // nsub: len(F) * (k + 1) // nsub])
            body4(a, reads1, mfmas1, rs1, extra=ex)
        wpfetch()
        callB(8 - nsh)
    else:
        callB(8)
    st(9)
    a(f"""
    s_mul_i32 s37, s{RB}, 28
    s_lshl_b32 s40, s{CB}, 1
    s_add_u32 s37, s37, s40
    s_add_u32 s37, s37, s28
    s_lshl_b32 s37, s37, 14
    s_lshl_b32 s40, s27, 13
    s_add_u32 s37, s37, s40
    s_add_u32 s37, s37, {U_OFF}
    s_add_u32 s40, s37, 4096
    v_and_b32 v16, 15, v0
    v_and_b32 v17, 1, v{VG}
    v_lshlrev_b32 v17, 1, v17
    v_lshrrev_b32 v18, 1, v{VG}
    v_add_u32 v17, v17, v18
    v_lshlrev_b32 v16, 4, v16
    v_lshl_add_u32 v16, v17, 8, v16
    s_waitcnt lgkmcnt(0)
    """)
    k = 0
    for c in range(4):
        for q in range(2):
            t = FR3 + (k % 8) * 4; k += 1
            for d in range(4):
                src = acc(2 * q + (d >> 1), c) + 2 * (d & 1)
                a(f"v_pk_mul_f32 {vr(src,2)}, {vr(src,2)}, {vr(src-ACC+A1,2)}")
            for d in range(4):
                src = acc(2 * q + (d >> 1), c) + 2 * (d & 1)
                a(f"v_cvt_pk_bf16_f32 v{t+d}, v{src}, v{src+1}")
            a(f"s_nop 1\nv_permlane16_swap_b32 v{t}, v{t+2}\nv_permlane16_swap_b32 v{t+1}, v{t+3}")
            a(f"buffer_store_dwordx4 {vr(t,4)}, v16, s[{WS}:{WS+3}], s{37 if c < 2 else 40} offen offset:{2048*q + 1024*(c&1)}{wsc}")
    a(f"v_mov_b32 v96, {CNT+16}\nv_mov_b32 v97, 1\ns_mov_b64 exec, 1\nds_add_u32 v96, v97\ns_mov_b64 exec, -1")
    a(f"s_lshl_b32 s40, s{RB}, 4\ns_add_u32 s40, s40, s{CB}\ns_lshl_b32 s40, s40, 6\ns_add_u32 s40, s40, {FL3_OFF}")
    set_flag(a, 40, 96, 1, 4)
    st(10)

    a("L4_cons:")
    tile4()
    UR, WF, ACC4, AD4, D4 = 32, 144, 208, 2, (14 if 'deep' in p4mode else 2 if 'shallow' in p4mode else 7)
    def acc4(b, c): return ACC4 + (b * 2 + c) * 4
    def fragw(buf, kk, b): return WF + buf * 32 + kk * 16 + b * 4
    def fragu(s_, kk, c): return UR + (s_ % D4) * 16 + kk * 8 + c * 4
    def reads4(s_):
        sl = s_ % 14
        if 'now' in p4mode: return ["s_nop 0"]
        return [f"ds_read_b64_tr_b16 {vr(fragw(s_&1,kk,b)+2*hh,2)}, v{AD4+4*(sl//7)+b} offset:{(sl%7)*8192+(32*kk+4*hh)*128}" for kk in range(2) for b in range(4) for hh in range(2)]
    def mfmas4(s_):
        if 'nomfma' in p4mode: return ["s_nop 0"] * 16
        return [f"{MF} {vr(acc4(b,c),4)}, {vr(fragw(s_&1,kk,b),4)}, {vr(fragu(s_,kk,c),4)}, {vr(acc4(b,c),4)}" for kk in range(2) for b in range(4) for c in range(2)]
    S_KS4, S_KU4, S_UB4, S_REM = 32, 34, 33, 41
    def uaddr():
        return [f"s_lshl_b32 s{S_KU4}, s{S_KS4}, {14 if 'hit' not in p4mode else 0}", f"s_add_u32 s{S_KU4}, s{S_KU4}, s{S_UB4}", f"s_sub_u32 s{S_REM}, s{S_REM}, 1", f"s_cmp_lt_i32 s{S_REM}, 0",
                f"s_cmov_b32 s{S_KU4}, 0x7fff0000", f"s_add_u32 s{S_KS4}, s{S_KS4}, 1", f"s_cmp_eq_u32 s{S_KS4}, 28", f"s_cselect_b32 s{S_KS4}, 0, s{S_KS4}"]
    def uload(s_, kk): return [f"buffer_load_dwordx4 {vr(fragu(s_,kk,c),4)}, v10, s[{WS}:{WS+3}], s{S_KU4} offen offset:{2048*kk+1024*c}{usc}" for c in range(2)]
    YR, GR, OUT, YX = 32, 20, 44, 48
    srd(a, OUT, P['out'], SIZE['out'])
    a(f"""
    v_bfe_u32 v16, v0, 2, 2
    v_lshl_add_u32 v17, v{VG}, 3, v16
    v_lshlrev_b32 v17, 7, v17
    v_and_b32 v18, 3, v0
    v_lshl_add_u32 v17, v18, 3, v17
    v_lshrrev_b32 v16, 1, v16
    v_and_b32 v18, 1, v{VG}
    v_lshl_add_u32 v16, v18, 1, v16
    v_lshl_add_u32 v{AD4}, v16, 5, v17
    """)
    for b in range(1, 4): a(f"v_xor_b32 v{AD4+b}, {32*b}, v{AD4}")
    for b in range(4): a(f"v_add_u32 v{AD4+4+b}, {7*8192}, v{AD4+b}")
    a(f"""
    s_lshl_b32 s40, s26, 12
    v_lshlrev_b32 v10, 4, v0
    v_add_u32 v10, s40, v10
    s_mul_i32 s{S_UB4}, s{RB4}, {28*16384}
    s_add_u32 s{S_UB4}, s{S_UB4}, {U_OFF}
    s_mov_b32 s{S_REM}, 28
    s_lshl_b32 s40, s26, 5
    v_add_u32 v16, s40, v11
    v_and_b32 v18, 1, v{VG}
    v_lshlrev_b32 v18, 1, v18
    v_lshrrev_b32 v19, 1, v{VG}
    v_add_u32 v18, v18, v19           ; gg
    s_lshl_b32 s37, s{RB4}, 7
    v_add_u32 v24, s37, v16
    v_lshlrev_b32 v24, 11, v24
    v_lshl_add_u32 v24, v18, 4, v24
    s_lshl_b32 s40, s{DB}, 7
    v_add_u32 v24, s40, v24
    v_sub_u32 v19, 3, v18
    s_cmp_ge_u32 s{DB}, 8
    s_cselect_b64 vcc, -1, 0
    s_cselect_b32 s48, 1, 0
    v_cndmask_b32 v18, v18, v19, vcc
    v_mul_u32_u24 v25, 144, v16
    v_lshl_add_u32 v25, v18, 4, v25
    v_add_u32 v25, {YBASE}, v25
    s_lshl_b32 s40, s26, 8
    s_add_u32 s40, s40, {YBASE + 20480}
    v_lshlrev_b32 v26, 2, v11
    v_add_u32 v26, s40, v26
    """)
    ks4(S_KS4)
    for i in range(32): a(f"v_mov_b32 v{ACC4+i}, 0")
    a(f"s_barrier")
    st(11)
    a("\n".join(reads4(0)))
    for s_ in range(D4 - 1 - ramp): a("\n".join(uaddr() + uload(s_, 0) + uload(s_, 1)))
    nxt = D4 - 1 - ramp
    for s_ in range(ramp):
        M = mfmas4(s_)
        f = spread(rd4, reads4(s_ + 1))
        for h in range(2):
            L = uload(nxt, 0) + uload(nxt, 1); nxt += 1
            f.setdefault(8 * h, []).insert(0, "\n".join(uaddr()))
            for j in range(4): f.setdefault(8 * h + 2 * j, []).append(L[j])
        a(f"s_waitcnt vmcnt({4*(D4-2-ramp+s_)}) lgkmcnt(0)")
        a("\n".join(interleave(M, f)))
    a("\n".join(uaddr()))
    if ramp: a(f"s_mov_b32 s{S_CNT}, 2\ns_branch L4_s{ramp}")
    if dev and not ramp: a("s_waitcnt vmcnt(20)"); st(13 + 2)
    if dev == 3: a(f"s_memtime s[98:99]\ns_waitcnt lgkmcnt(0)\nv_writelane_b32 v250, s98, 0\ns_mov_b32 s49, 1")
    a(f"s_mov_b32 s{S_CNT}, 2\n.p2align 6\nL4_k:")
    for s_ in range(14):
        M = mfmas4(s_)
        f = spread(rd4, reads4(s_ + 1))
        UL = uload(s_ - 1, 0) + uload(s_ - 1, 1)
        for pos, l in zip(upos, UL):
            if 'nou' not in p4mode: f.setdefault(pos, []).append(l)
        ua = uaddr()
        f.setdefault(max(upos), []).extend(ua[:2])
        f.setdefault(min(max(upos) + 1, 15), []).extend(ua[2:5])
        f.setdefault(min(max(upos) + 2, 15), []).extend(ua[5:])
        if s_ == 13: f.setdefault(15, []).extend([f"s_sub_u32 s{S_CNT}, s{S_CNT}, 1", f"s_cmp_lg_u32 s{S_CNT}, 0"])
        if ramp and s_ == ramp: a(f"L4_s{ramp}:")
        a(f"s_waitcnt vmcnt({4*(D4-2)}) lgkmcnt(0)")
        if s_ in xb:
            if dev == 3: a(f"s_memtime s[98:99]\ns_waitcnt lgkmcnt(0)\ns_mov_b32 m0, s49\ns_nop 0\nv_writelane_b32 v250, s98, m0\ns_add_u32 s49, s49, 1")
            a("s_barrier")
            if dev == 3: a(f"s_memtime s[98:99]\ns_waitcnt lgkmcnt(0)\ns_mov_b32 m0, s49\ns_nop 0\nv_writelane_b32 v250, s98, m0\ns_add_u32 s49, s49, 1")
        a("\n".join(interleave(M, f)))
    a("s_cbranch_scc1 L4_k")
    if dev == 3:
        a(f"s_memtime s[98:99]\ns_waitcnt lgkmcnt(0)\ns_mov_b32 m0, s49\ns_nop 0\nv_writelane_b32 v250, s98, m0\nv_lshlrev_b32 v251, 2, v0\ns_lshl_b32 s60, s2, 8\ns_add_u32 s60, s60, {TS_OFF + 0x40000}\nbuffer_store_dword v250, v251, s[{WS}:{WS+3}], s60 offen")
    st(12)
    a("s_waitcnt vmcnt(0)")
    def yidx(pr, c): return pr * 2 + c
    L_ = []
    for c in range(2): a(f"ds_read_b32 v{GR+c}, v26 offset:{16*c}")
    def yreads(mirror):
        for pr in range(2):
            for c in range(2):
                o = 4 * c * 144 + 64 * ((1 - pr) if mirror else pr)
                a(f"ds_read_b128 {vr(YR+4*yidx(pr,c),4)}, v25 offset:{o}")
                if mirror: a(f"ds_read_b32 v{YX+yidx(pr,c)}, v25 offset:{o+16}")
        a("s_nop 1")
        for pr in range(2):
            for c in range(2):
                for r in range(4): a(f"v_permlane16_swap_b32 v{acc4(2*pr,c)+r}, v{acc4(2*pr+1,c)+r}")
        a("s_waitcnt lgkmcnt(0)")
        for c in range(2): a(f"v_sub_f32 v{28+c}, 1.0, v{GR+c}")
    def epi(mirror):
        yreads(mirror)
        for pr in range(2):
            for c in range(2):
                t = 64 + yidx(pr, c) * 16
                y = YR + 4 * yidx(pr, c)
                for d in range(4):
                    if not mirror: a(f"v_lshlrev_b32 v{t+2*d}, 16, v{y+d}\nv_and_b32 v{t+2*d+1}, 0xffff0000, v{y+d}")
                    else: a(f"v_lshlrev_b32 v{t+2*d}, 16, v{YX+yidx(pr,c) if d == 0 else y+4-d}\nv_and_b32 v{t+2*d+1}, 0xffff0000, v{y+3-d}")
                for d in range(4):
                    src = acc4(2 * pr + (d >> 1), c) + 2 * (d & 1)
                    for h in range(2):
                        a(f"v_mul_f32 v{src+h}, v{28+c}, v{src+h}")
                        a(f"v_fmac_f32 v{src+h}, v{GR+c}, v{t+2*d+h}")
                for d in range(4):
                    src = acc4(2 * pr + (d >> 1), c) + 2 * (d & 1)
                    a(f"v_cvt_pk_bf16_f32 v{t+8+d}, v{src}, v{src+1}")
                a(f"s_mov_b32 s40, {4*c*2048}")
                a(f"buffer_store_dwordx4 {vr(t+8,4)}, v24, s[{OUT}:{OUT+3}], s40 offen offset:{64*pr}{osc}")
        if dev:
            a("s_waitcnt vmcnt(0)"); st(13, 2)
        a("s_endpgm")
    a("s_cmp_lg_u32 s48, 0\ns_cbranch_scc1 L4_mir")
    epi(False)
    a("L4_mir:")
    epi(True)

    a(".p2align 6\nL_b4:")
    cnt = [f"s_sub_u32 s{S_CNT}, s{S_CNT}, 1", f"s_cmp_lg_u32 s{S_CNT}, 0"]
    body4(a, reads1, mfmas1, rs1, tail=cnt, extra=lambda sl, ss: ({14: cnt} if (sl, ss) == (1, 1) else {}), mid="s_cbranch_scc0 L_b4r\nL_b4m:")
    a("s_cbranch_scc1 L_b4\nL_b4r:\ns_setpc_b64 s[62:63]")
    a("L_gelu:")
    if swp and shadow and not dry: gg_skip = True
    else: gg_skip = False
    a(f"L_gelu2:\nv_mov_b32 v{CK0}, {fl(K0)}\nv_mov_b32 v{CK0+1}, {fl(K0)}\nv_mov_b32 v{CK1}, {fl(K1C)}\nv_mov_b32 v{CK1+1}, {fl(K1C)}\nv_mov_b32 v{CONE}, 1.0\nv_mov_b32 v{CONE+1}, 1.0\ns_nop 1")
    for g in range(0 if gg_skip else 32 // gg):
        L = gelu_list([R1 + 2 * gg * g + 2 * i for i in range(gg)], [R2 + 2 * gg * g + 2 * i for i in range(gg)], 64 + (8 * (g & 1) if gg == 4 else 0), CK0, CK1, CONE)
        for i in range(gg):
            r = 2 * gg * g + 2 * i; m = (r >> 2) & 3
            L.append(f"v_pk_mov_b32 {vr(R1+r,2)}, {vr(BS+(m&2),2)}, {vr(BS+(m&2),2)} op_sel:[{m&1},{m&1}]")
        a("\n".join(L))
    a("s_setpc_b64 s[62:63]")
    a("L_side0:\ns_waitcnt lgkmcnt(0)")
    srd(a, WS, P['ws'], 0x4000000)
    srd(a, XS, P['x'], SIZE['x'])
    a(f"v_mov_b32 v2, {CNT}\nv_mov_b32 v4, 0\nv_mov_b32 v5, 0\nv_mov_b32 v6, 0\nv_mov_b32 v7, 0\nds_write_b128 v2, v[4:7]\nds_write_b128 v2, v[4:7] offset:16")
    st(0)
    KA0, KA1, AD = 12, 13, 2
    def frag(buf, op, i): return 32 + (buf * 8 + op * 4 + i) * 4
    def mfmas3(buf):
        return [f"{MF} {vr(acc(b,c),4)}, {vr(frag(buf,0,b),4)}, {vr(frag(buf,1,c),4)}, {vr(acc(b,c),4)}" for b in range(4) for c in range(4)]
    def cons3_addr(wf, wt):
        a(f"s_lshl_b32 s37, s{wt}, 13\ns_add_u32 s37, s37, 16384\nv_add_u32 v{AD+2}, s37, v{KA0}\nv_add_u32 v{AD+3}, s37, v{KA1}")
    def cons3_hi():
        for i in range(4): a(f"v_add_u32 v{AD+4+i}, 0x10000, v{AD+i}")
    reads3 = None
    from gen_side import gen_side
    gen_side(a, locals(), sys.modules[__name__])
    a("L_end:\ns_endpgm")
    return ("fused_kernel", a.text(), 256, 256, 100), ("fused_kernel", 256, 512, CNT + 64)

def pfsplit(n): return (n // 3, n // 3, n - 2 * (n // 3))

if __name__ == "__main__":
    import json
    out = sys.argv[1]; kw = json.loads(sys.argv[2]) if len(sys.argv) > 2 else {}
    b, l = gen(**kw)
    open(out, "w").write(kernel_file([l], [b]))
```
